```python
import torch

def _softmax(x, axis=-1):
    return torch.softmax(x, dim=axis)
def _gelu(x):
    return torch.nn.functional.gelu(x, approximate="tanh")
def _silu(x):
    return torch.nn.functional.silu(x)
def _sigmoid(x):
    return torch.sigmoid(x)
def _layernorm(x, axis=-1, eps=1e-5):
    m = x.mean(dim=axis, keepdim=True)
    v = x.var(dim=axis, keepdim=True, unbiased=False)
    return (x - m) / torch.sqrt(v + eps)
def _scatter_add(tgt, idx, src, axis=0):
    return tgt.clone().index_add_(axis, idx, src)
def _segment_sum(src, seg, n):
    out = torch.zeros((n,) + src.shape[1:], dtype=src.dtype)
    return out.index_add_(0, seg, src)
def _pad(x, pw):
    flat = tuple(v for pair in reversed(pw) for v in pair)
    return torch.nn.functional.pad(x, flat)

kernel_name = 'parallel_sum__ssm_conv_s5__dense_activation_mish__prompt'

def setup_inputs():

    _w = (lambda a: (lambda t: t.to(torch.bfloat16) if t.is_floating_point() else t)(torch.as_tensor(a)))
    def _A_setup():
        B, S, D = 1, 2048, 448
        P = D
        Lambda_re = -0.5 * (lambda _x: torch.exp(torch.as_tensor(_x)))((lambda *s: torch.randn(*s, dtype=torch.bfloat16) * 0.2)(P))
        Lambda_im = (lambda *s: torch.randn(*s, dtype=torch.bfloat16) * 0.8)(P) * 1.0
        B_re = (lambda *s: torch.randn(*s, dtype=torch.bfloat16) * 0.2)(P, D) * (D ** -0.5)
        B_im = (lambda *s: torch.randn(*s, dtype=torch.bfloat16) * 0.2)(P, D) * (D ** -0.5)
        C_re = (lambda *s: torch.randn(*s, dtype=torch.bfloat16) * 0.2)(D, P) * (P ** -0.5)
        C_im = (lambda *s: torch.randn(*s, dtype=torch.bfloat16) * 0.2)(D, P) * (P ** -0.5)
        log_dt = (lambda *s: torch.randn(*s, dtype=torch.bfloat16) * 0.2)(P) * 0.3 - 2.0
        Dskip = (lambda *s: torch.randn(*s, dtype=torch.bfloat16) * 0.05)(D)
        return {
            "x": _w((lambda *s: torch.randn(*s, dtype=torch.bfloat16) * 0.05)(B, S, D)),
            "Lambda_re": _w(Lambda_re),
            "Lambda_im": _w(Lambda_im),
            "B_re": _w(B_re),
            "B_im": _w(B_im),
            "C_re": _w(C_re),
            "C_im": _w(C_im),
            "log_dt": _w(log_dt),
            "Dskip": _w(Dskip),
        }
    _A_in = _A_setup()

    def _B_setup():
        B, S, D, F = 1, 2048, 448, 1792
        return {
            "x": _w((lambda *s: torch.randn(*s, dtype=torch.bfloat16) * 0.05)(B, S, D)),
            "w1": _w((lambda *s: torch.randn(*s, dtype=torch.bfloat16) * 0.8)(D, F) * (D ** -0.5)),
            "b1": _w((lambda *s: torch.randn(*s, dtype=torch.bfloat16) * 0.2)(F)),
            "w2": _w((lambda *s: torch.randn(*s, dtype=torch.bfloat16) * 0.2)(F, D) * (F ** -0.5)),
        }
    _B_in = _B_setup()

    return {
        "A_x": _A_in["x"],
        "A_Lambda_re": _A_in["Lambda_re"],
        "A_Lambda_im": _A_in["Lambda_im"],
        "A_B_re": _A_in["B_re"],
        "A_B_im": _A_in["B_im"],
        "A_C_re": _A_in["C_re"],
        "A_C_im": _A_in["C_im"],
        "A_log_dt": _A_in["log_dt"],
        "A_Dskip": _A_in["Dskip"],
        "B_x": _B_in["x"],
        "B_w1": _B_in["w1"],
        "B_b1": _B_in["b1"],
        "B_w2": _B_in["w2"],
    }

def reference(A_x, A_Lambda_re, A_Lambda_im, A_B_re, A_B_im, A_C_re, A_C_im, A_log_dt, A_Dskip, B_x, B_w1, B_b1, B_w2):
    def _A_ref(x, Lambda_re, Lambda_im, B_re, B_im, C_re, C_im, log_dt, Dskip):
        Bsz, L, H = x.shape
        Lam = Lambda_re + 1j * Lambda_im
        Bmat = B_re + 1j * B_im
        Cmat = C_re + 1j * C_im
        dt = torch.exp(log_dt)
        Lam_bar = torch.exp(dt * Lam)
        B_bar = ((Lam_bar - 1.0) / Lam)[:, None] * Bmat
        Bu = torch.einsum("bld,pd->blp", x + 0j, B_bar)
        h = torch.zeros_like(Bu[:, 0, :])
        hs = []
        for t in range(L):
            h = Lam_bar[None, :] * h + Bu[:, t, :]
            hs.append(h)
        hseq = torch.stack(hs, 1)
        y = 2.0 * torch.einsum("blp,dp->bld", hseq, Cmat).real + x * Dskip[None, None, :]
        return y

    def _B_ref(x, w1, b1, w2):
        h = torch.einsum("bsd,df->bsf", x, w1) + b1
        sp = torch.log1p(torch.exp(-torch.abs(h))) + torch.where(h > 0, h, torch.zeros_like(h))
        act = h * torch.tanh(sp)
        return torch.einsum("bsf,fd->bsd", act, w2)

    x = A_x
    xn = _layernorm(x, axis=-1)
    return x + _A_ref(xn, A_Lambda_re, A_Lambda_im, A_B_re, A_B_im, A_C_re, A_C_im, A_log_dt, A_Dskip) + _B_ref(xn, B_w1, B_b1, B_w2)
```

```python
import re

TRANS = ("v_exp_f32", "v_log_f32", "v_rcp_f32", "v_rsq_f32", "v_sqrt_f32", "v_sin_f32", "v_cos_f32")
RMW = ("v_fmac_f32", "v_dot2c_f32_bf16", "v_permlane32_swap_b32", "v_permlane16_swap_b32", "v_writelane_b32",
       "buffer_load_short_d16_hi", "buffer_load_short_d16")
_REG = re.compile(r"^(-|abs\()?([vas])(\d+)\)?$")
_RNG = re.compile(r"^(-)?([vas])\[(\d+):(\d+)\]$")


def regs_of(op):
    op = op.strip()
    m = _REG.match(op)
    if m:
        return [(m.group(2), int(m.group(3)))]
    m = _RNG.match(op)
    if m:
        return [(m.group(2), i) for i in range(int(m.group(3)), int(m.group(4)) + 1)]
    if op in ("vcc", "m0", "exec", "scc"):
        return [(op, 0)]
    return []


class Ins:
    def __init__(self, text, after=(), raw=False):
        self.text = text
        self.after = [a for a in after if a is not None]
        self.raw = raw
        self.reads, self.writes = set(), set()
        self.srcc = set()
        self.kind = "raw"
        self.mn = ""
        if not raw:
            self._parse()

    def _parse(self):
        parts = self.text.split(None, 1)
        mn = parts[0]
        self.mn = mn
        rest = parts[1] if len(parts) > 1 else ""
        ops = [o.strip() for o in rest.split(",")] if rest else []
        mods = ""
        fixed = []
        for i, o in enumerate(ops):
            if " " in o:
                head, tail = o.split(None, 1)
                fixed.append(head)
                mods = tail + "," + ",".join(ops[i + 1:])
                break
            fixed.append(o)
        ops = fixed
        self.mods = mods
        base = re.sub(r"_(e32|e64|dpp|sdwa)$", "", mn)
        self.base = base
        R = lambda idx: {r for i in idx if i < len(ops) for r in regs_of(ops[i])}
        n = len(ops)
        self.dpp = mn.endswith("_dpp")
        if mn.startswith("v_mfma"):
            self.kind = "mfma"
            self.writes, self.reads, self.srcc = R([0]), R([1, 2, 3]), R([3])
            self.ab = R([1, 2])
            self.passes = 8 if "32x32" in mn else 4
        elif mn.startswith("v_"):
            self.kind = "valu"
            self.writes, self.reads = R([0]), R(range(1, n))
            if base in RMW or self.dpp:
                self.reads |= R([0])
            if "permlane" in mn:
                self.writes |= R([1])
            if base in ("v_add_co_u32", "v_addc_co_u32"):
                self.writes |= R([1])
            self.dppsrc = R([1]) if self.dpp else set()
        elif mn.startswith("ds_read"):
            self.kind = "ds"
            self.writes, self.reads = R([0]), R(range(1, n))
        elif mn.startswith("ds_write"):
            self.kind = "ds"
            self.reads = R(range(n))
        elif mn.startswith(("buffer_load", "global_load")):
            self.kind = "vm"
            if re.search(r"\blds\b", mods):
                self.reads = R(range(n)) | {("m0", 0)}
            else:
                self.writes, self.reads = R([0]), R(range(1, n))
                if base in RMW:
                    self.reads |= R([0])
        elif mn.startswith(("buffer_store", "buffer_atomic", "global_store")):
            self.kind = "vm"
            self.reads = R(range(n))
            self.wide = R([0]) if mn.endswith(("x4", "x3")) else set()
        elif mn.startswith(("s_load", "s_memtime", "s_memrealtime")):
            self.kind = "smem"
            self.writes, self.reads = R([0]), R(range(1, n))
        elif mn.startswith("s_"):
            self.kind = "salu"
            if mn.startswith(("s_cmp", "s_cbranch", "s_branch", "s_barrier", "s_nop", "s_waitcnt", "s_endpgm",
                              "s_setprio", "s_sleep", "s_bitcmp")):
                self.reads = R(range(n))
            else:
                self.writes, self.reads = R([0]), R(range(1, n))
            if "vcc" in mn:
                self.reads |= {("vcc", 0)}
        else:
            raise ValueError("unknown instruction: " + self.text)


def states_of(i):
    if i.raw:
        return 0
    if i.mn == "s_nop":
        return int(i.text.split()[1], 0) + 1
    return 1


def need_states(p, c):
    n = 0
    vec = lambda s: {r for r in s if r[0] in "va"}
    sg = lambda s: {r for r in s if r[0] in ("s", "vcc")}
    if p.kind == "mfma":
        big = p.passes == 8
        if c.kind == "mfma":
            if p.writes & c.ab:
                n = max(n, 12 if big else 8)
            if p.writes & c.srcc and not (p.writes == c.srcc and p.passes == c.passes):
                n = max(n, 10 if big else 6)
            if p.writes & c.writes and not (p.writes & c.srcc):
                n = max(n, 12 if big else 8)
        elif c.kind in ("valu", "ds", "vm"):
            if p.writes & (c.reads | c.writes):
                n = max(n, 12 if big else 8)
            if c.kind == "valu" and p.srcc & c.writes:
                n = max(n, 7 if big else 3)
    elif p.kind == "valu":
        w = vec(p.writes)
        if c.kind == "mfma" and w & c.reads:
            n = max(n, 3 if p.base.startswith("v_dot") else 2)
        if c.kind == "valu":
            if c.dpp and w & c.reads:
                n = max(n, 2)
            if "permlane" in c.mn and w & c.reads:
                n = max(n, 2)
            if c.base in ("v_readfirstlane_b32", "v_readlane_b32") and w & c.reads:
                n = max(n, 1)
            if p.base in TRANS and w & c.reads:
                n = max(n, 1)
            if sg(p.writes) & c.reads:
                n = max(n, 4 if "lane" in c.mn else 2)
        if p.base.startswith("v_dot") and c.kind in ("valu", "ds", "vm") and w & (c.reads | c.writes):
            same_c = False
            if c.base == p.base:
                ops = [o.strip() for o in c.text.split(None, 1)[1].split(",")]
                ab = set(regs_of(ops[1])) | set(regs_of(ops[2].split()[0]))
                same_c = not (w & ab)
            if not same_c:
                n = max(n, 3)
        if c.kind == "vm" and sg(p.writes) & c.reads:
            n = max(n, 5)
        if c.kind == "salu" and sg(p.writes) & c.reads:
            n = max(n, 1)
    elif p.kind == "vm":
        if getattr(p, "wide", None) and c.kind in ("valu", "mfma") and p.wide & c.writes:
            n = max(n, 2)
    elif p.kind == "salu":
        if ("m0", 0) in p.writes and c.kind == "vm" and ("m0", 0) in c.reads:
            n = max(n, 1)
    return n


class Stream:
    def __init__(self):
        self.items = []

    def __call__(self, text, after=()):
        last = None
        for line in text.strip().split("\n"):
            line = line.strip()
            if not line:
                continue
            last = Ins(line, after)
            self.items.append(last)
        return last

    def add(self, ins):
        self.items.append(ins)
        return ins

    def raw(self, text):
        self.items.append(Ins(text, raw=True))

    def resolve(self):
        out, vm, lg = [], [], []
        for c in self.items:
            if c.raw:
                out.append(c)
                continue
            if c.mn == "s_waitcnt":
                m = re.search(r"vmcnt\((\d+)\)", c.text)
                if m:
                    k = int(m.group(1))
                    vm = vm[len(vm) - k:] if k < len(vm) else vm
                    if k == 0:
                        vm = []
                m = re.search(r"lgkmcnt\((\d+)\)", c.text)
                if m:
                    k = int(m.group(1))
                    lg = lg[len(lg) - k:] if k < len(lg) else lg
                    if k == 0:
                        lg = []
                out.append(c)
                continue
            touch = c.reads | c.writes
            w = []
            for q, name, cap in ((vm, "vmcnt", 63), (lg, "lgkmcnt", 15)):
                idx = -1
                for i, p in enumerate(q):
                    if (p.writes & touch) or any(p is a for a in c.after):
                        idx = i
                if idx >= 0:
                    k = len(q) - 1 - idx
                    if name == "lgkmcnt" and any(p.kind == "smem" and not p.mn.startswith("s_mem") for p in q):
                        k = 0
                    if name == "lgkmcnt" and q[idx].kind == "smem":
                        k = 0
                    if name == "lgkmcnt":
                        k = min(k, sum(1 for p in q[idx + 1:] if p.kind == "ds"))
                    k = min(k, cap)
                    w.append(f"{name}({k})")
                    if k == 0:
                        del q[:]
                    else:
                        del q[:idx + 1]
            if w:
                out.append(Ins("s_waitcnt " + " ".join(w)))
            out.append(c)
            if c.kind == "vm":
                vm.append(c)
                assert len(vm) <= 63, "vmcnt overflow at " + c.text
            elif c.kind in ("ds", "smem"):
                lg.append(c)
        fin = []
        for c in out:
            if not c.raw:
                dist, pad = 0, 0
                for p in reversed(fin):
                    if dist >= 12:
                        break
                    if not p.raw:
                        pad = max(pad, need_states(p, c) - dist)
                    dist += states_of(p)
                if pad > 0:
                    fin.append(Ins(f"s_nop {pad - 1}"))
            fin.append(c)
        return fin


def merge(*queues):
    queues = [list(q) for q in queues if q]
    total = sum(len(q) for q in queues)
    pos = [0] * len(queues)
    out = []
    for _ in range(total):
        k = min((i for i in range(len(queues)) if pos[i] < len(queues[i])),
                key=lambda i: (pos[i] + 0.5) / len(queues[i]))
        out.append(queues[k][pos[k]])
        pos[k] += 1
    return out


def L(text, after=()):
    return [Ins(t.strip(), after) for t in text.strip().split("\n") if t.strip()]
```

```python
import struct
import sys

from asmfw import Ins, L, Stream, merge

NAME = "parallel_sum__ssm_conv_s5__dense_activation_mish__prompt"
f2u = lambda x: "0x%08x" % struct.unpack("<I", struct.pack("<f", x))[0]
LOG2E, LN2 = 1.4426950408889634, 0.6931471805599453

XN_TILE, XN_CH = 56 * 528, 528
MEAN, RS = 59136, 59392
RING, RING_SZ = 60416, 24576
LDS_BYTES = RING + 4 * RING_SZ
WS_FL, WS_PT, WS_STAMP, WS_SIZE = 0x20000, 0x100000, 0x40000, 0x1000000

sW, sM, sS, sRING, sOFF, sLO, sHI, sL2E, sBOFF, sW1 = 3, 4, 5, 6, 7, 8, 9, 10, 11, 12
T0, T1, T2 = 13, 14, 15
X, BRE, BIM, CRE, CIM, W1, W2, OUT, WS, EE, DBG = 16, 20, 24, 28, 32, 36, 40, 44, 48, 52, 56
pLRE, pLIM, pLDT, pDSK, pB1 = 60, 62, 64, 66, 68
sW2, sEOWN, sSPIN, sE, sROW, sC, sHM = 70, 74, 75, 76, 79, 80, 84
STAMP0 = 86
srd = lambda b: f"s[{b}:{b + 3}]"

vXO, vXW, vXR = 1, 2, 3
vDB, vDW1, vDW2, vDC = 4, 8, 12, 16
vRB, vRW1, vRW2, vRC = 20, 24, 25, 26
vHR, vHW, vSW, vSR = 30, 32, 33, 37
vPT, vZ0, vEL, vES = 45, 47, 48, 49
AR, AX, GO, GX, P16R, P16X, P32R, P32X, P64R, P64X, PKR, PKX = range(50, 62)
vRSF = 62
SA, FA, FB, BIAS, RSS = 64, 96, 128, 160, 192
WF, TMP = 224, 240
vE0, vEH, vDSK, vDBG = 252, 253, 254, 255
vr = lambda b, n: f"v[{b}:{b + n - 1}]"
ar_ = lambda b, n: f"a[{b}:{b + n - 1}]"
DPPX = "quad_perm:[1,0,3,2] row_mask:0xf bank_mask:0xf"
MF = "v_mfma_f32_32x32x16_bf16"


class Gen:
    def __init__(self, stamps=False, lead=20, fill=(6, 7, 9, 4), **kw):
        self.S = Stream()
        self.stamps = stamps
        self.nstamp = 0
        self.lead = lead
        self.fill = fill
        self.tail = []
        self.opt = kw

    def stamp(self):
        if self.stamps:
            r = STAMP0 + 2 * self.nstamp
            self.S(f"{self.stamps} s[{r}:{r + 1}]")
            self.nstamp += 1

    def build_slots(self):
        slots = []

        def group(sr, voff, soff_ins, kinds=None):
            g = len(slots) // 4
            pos = (g % 6) * 4096
            for j in range(4):
                pre = []
                if j == 0:
                    pre += L(f"s_add_u32 m0, s{sRING}, {pos}") + L(soff_ins)
                s_, imm = sr, j * 1024
                if kinds:
                    s_, imm = kinds[j >> 1], (j & 1) * 1024
                    if j == 2:
                        pre += L(f"s_add_u32 m0, s{sRING}, {pos + 2048}")
                d = Ins(f"buffer_load_dwordx4 v{voff + j}, {srd(s_)}, s{sOFF} offen offset:{imm} lds")
                slots.append((pre, d))

        for g in range(7):
            group(None, vDB, f"s_add_u32 s{sOFF}, s{sBOFF}, {g * 128}", kinds=(BRE, BIM))
        for ps in range(2):
            for g in range(7):
                group(W1, vDW1, f"s_add_u32 s{sOFF}, s{sW1}, {ps * 256 + g * 64 * 3584}")
        for r in range(3):
            for g in range(4):
                group(W2, vDW2, f"s_add_u32 s{sOFF}, s{sW2 + r}, {g * 64 * 896}")
            group(CRE, vDC, f"s_mov_b32 s{sOFF}, s{sC + r}")
            group(CIM, vDC, f"s_mov_b32 s{sOFF}, s{sC + r}")
        for g in range(2):
            group(W2, vDW2, f"s_add_u32 s{sOFF}, s{sW2 + 3}, {g * 64 * 896}")
        group(BRE, vDC, f"s_mov_b32 s{sOFF}, s{sC + 3}")
        self.slots = slots
        self.slot_readers = {}

    def dma(self, n):
        if n >= len(self.slots):
            return []
        pre, d = self.slots[n]
        d.after = list(self.slot_readers.get(n - 24, []))
        return pre + [d]

    def wread(self, p):
        b = WF + 4 * (p % 4)
        pos = (p % 24) * 1024
        gpos = pos & ~4095
        g0 = p & ~3
        if p < 28:
            ins, dep = L(f"ds_read_b128 {vr(b, 4)}, v{vRB + p % 4} offset:{gpos}"), range(g0, g0 + 4)
        elif p < 84:
            ins, dep = L(f"ds_read_b64_tr_b16 {vr(b, 2)}, v{vRW1} offset:{pos}\n"
                         f"ds_read_b64_tr_b16 {vr(b + 2, 2)}, v{vRW1} offset:{pos + 256}"), [p]
        elif (p - 84) % 24 < 16:
            ins, dep = L(f"ds_read_b64_tr_b16 {vr(b, 2)}, v{vRW2} offset:{pos}\n"
                         f"ds_read_b64_tr_b16 {vr(b + 2, 2)}, v{vRW2} offset:{pos + 512}"), [p]
        else:
            ins, dep = L(f"ds_read_b128 {vr(b, 4)}, v{vRC + p % 4} offset:{gpos}"), range(g0, g0 + 4)
        deps = [self.slots[n][1] for n in dep]
        for i in ins:
            i.after = deps
        for n in dep:
            self.slot_readers.setdefault(n, []).extend(ins)
        return ins

    def aread(self, p):
        if p < 28:
            return [Ins(f"ds_read_b128 {ar_((p * 2 + t) * 4, 4)}, v{vXR} offset:{t * XN_TILE + p * 2 * XN_CH}")
                    for t in range(2)]
        if 84 <= p < 100:
            ks = p - 84
            return [Ins(f"ds_read_b128 {ar_((ks * 2 + t) * 4, 4)}, v{vHR + t} offset:{ks * 2048}") for t in range(2)]
        if 100 <= p < 108:
            ks = p - 84
            ri = (ks - 16) >> 2
            return [Ins(f"ds_read_b64_tr_b16 {ar_((ks * 2 + t) * 4 + 2 * rd, 2)}, v{vSR + t * 4 + ri * 2 + rd} "
                        f"offset:{ks * 2048 + rd * 256}") for t in range(2) for rd in range(2)]
        return []

    def mfmas(self, p):
        b = vr(WF + 4 * (p % 4), 4)
        out = []
        for t in range(2):
            if p < 84:
                ks, acc = p % 28, (SA, FA, FB)[p // 28] + 16 * t
            else:
                ks, acc = (p - 84) % 24, (FA, FB, SA)[(p - 84) // 24] + 16 * t
            a = ar_((ks * 2 + t) * 4, 4)
            c = vr(acc, 16) if ks else "0"
            x, y = (b, a) if 28 <= p < 84 else (a, b)
            out.append(Ins(f"{MF} {vr(acc, 16)}, {x}, {y}, {c}"))
        return out

    def run_pairs(self, p0, p1, fillers, rate, skip=1, extra=None, last_read=None):
        S = self.S
        cost = lambda i: 2 if i.base in ("v_exp_f32", "v_rcp_f32", "v_sin_f32", "v_cos_f32") else 1
        credit = 0.0
        for p in range(p0, p1):
            m0, m1 = self.mfmas(p)
            nxt = p + 2
            reads = []
            if last_read is None or nxt <= last_read:
                reads = self.aread(nxt) + self.wread(nxt)
                m0.after = [a for r in reads for a in r.after]
            dma = self.dma(p + self.lead)
            take = []
            if p - p0 >= skip:
                credit += rate
                while fillers and credit >= cost(fillers[0]):
                    credit -= cost(fillers[0])
                    take.append(fillers.pop(0))
            ex = extra.get(p, []) if extra else []
            n0 = max(0, (len(take) + len(dma) + len(ex) - len(reads)) // 2)
            for i in [m0] + reads + take[:n0] + [m1] + dma + ex + take[n0:]:
                S.add(i)

    def cmul_acc(self, d, y, pr, px):
        return L(f"v_fmac_f32_dpp v{d}, v{y}, v{px} {DPPX}\nv_fmac_f32 v{d}, v{pr}, v{y}")

    def rb(self, d, s):
        return L(f"v_cvt_pk_bf16_f32 v{d}, v{s}, v{s}\nv_and_b32 v{d}, 0xffff0000, v{d}")

    def allred8(self, r):
        return L(f"v_add_f32_dpp v{r}, v{r}, v{r} quad_perm:[1,0,3,2] row_mask:0xf bank_mask:0xf\n"
                 f"v_add_f32_dpp v{r}, v{r}, v{r} quad_perm:[2,3,0,1] row_mask:0xf bank_mask:0xf\n"
                 f"v_add_f32_dpp v{r}, v{r}, v{r} row_half_mirror row_mask:0xf bank_mask:0xf")

    def prologue(self):
        S = self.S
        S("s_cmp_ge_u32 s2, 224\ns_cbranch_scc1 L_exit")
        self.stamp()
        for b, off in ((X, 0), (BRE, 24), (BIM, 32), (WS, 120), (pB1, 88), (W1, 80), (CRE, 40), (CIM, 48), (W2, 96),
                       (OUT, 104), (DBG, 112)):
            S(f"s_load_dwordx2 s[{b}:{b + 1}], s[0:1], {off}")
        S(f"s_load_dwordx4 s[{pLRE}:{pLRE + 3}], s[0:1], 8\ns_load_dwordx4 s[{pLDT}:{pLDT + 3}], s[0:1], 56")
        S(f"v_lshrrev_b32 v1, 6, v0\nv_and_b32 v0, 63, v0\nv_readfirstlane_b32 s{sW}, v1")
        S(f"""s_and_b32 s{T0}, s2, 1
              s_mul_i32 s{T0}, s{T0}, 28
              s_lshr_b32 s{T1}, s2, 3
              s_add_u32 s{T0}, s{T0}, s{T1}
              s_lshr_b32 s{sS}, s{T0}, 3
              s_and_b32 s{T0}, s{T0}, 7
              s_bfe_u32 s{T1}, s2, 0x20001
              s_lshl3_add_u32 s{sM}, s{T1}, s{T0}""")
        for b, n in ((X, 2048 * 896), (BRE, 448 * 896), (BIM, 448 * 896), (CRE, 448 * 896), (CIM, 448 * 896),
                     (W1, 448 * 3584), (W2, 1792 * 896), (OUT, 2048 * 1792), (WS, WS_SIZE), (EE, 4096), (DBG, 256)):
            S(f"s_mov_b32 s{b + 2}, {n}\ns_mov_b32 s{b + 3}, 0x20000")
        a, b, c, d, e = 240, 241, 242, 243, 244
        S(f"""v_lshrrev_b32 v{a}, 3, v0
              v_and_b32 v{b}, 7, v0
              v_mul_u32_u24 v{vXO}, 896, v{a}
              v_lshl_add_u32 v{vXO}, v{b}, 4, v{vXO}
              s_lshl_b32 s{T0}, s{sM}, 6
              s_lshl4_add_u32 s{T0}, s{sW}, s{T0}
              s_mul_i32 s{sROW}, s{T0}, 896""")
        self.xl = []
        for g in range(2):
            if g:
                S(f"s_add_u32 s{T1}, s{sROW}, {8 * 896}")
            for i in range(7):
                r = FA + 28 * g + 4 * i
                self.xl.append(S(f"buffer_load_dwordx4 {vr(r, 4)}, v{vXO}, {srd(X)}, s{T1 if g else sROW} offen offset:{128 * i}"))
        S(f"""s_mul_i32 s{sRING}, s{sW}, {RING_SZ}
              s_add_u32 s{sRING}, s{sRING}, {RING}
              s_lshl_b32 s{T0}, s{sS}, 2
              s_add_u32 s{T0}, s{T0}, s{sW}
              s_mul_i32 s{sBOFF}, s{T0}, {16 * 896}
              s_lshl_b32 s{T1}, s{T0}, 12
              s_add_u32 s{EE}, s{WS}, s{T1}
              s_addc_u32 s{EE + 1}, s{WS + 1}, 0
              s_lshl_b32 s{T0}, s{T0}, 5""")
        S(f"""v_lshrrev_b32 v{c}, 1, v{a}
              v_xor_b32 v{c}, v{c}, v{b}
              v_mul_u32_u24 v{vDB}, 896, v{a}
              v_lshl_add_u32 v{vDB}, v{c}, 4, v{vDB}
              v_add_u32 v{vDB + 1}, {8 * 896 - 1024}, v{vDB}
              v_xor_b32 v{vDB + 2}, 64, v{vDB}
              v_xor_b32 v{vDB + 3}, 64, v{vDB + 1}""")
        S(f"""v_mov_b32 v{vDC}, v{vDB}
              v_mov_b32 v{vDC + 1}, v{vDB + 3}
              v_add_u32 v{vDC + 2}, {2 * (8 * 896 - 1024)}, v{vDB}
              v_add_u32 v{vDC + 3}, {2 * (8 * 896 - 1024)}, v{vDB + 3}""")
        S(f"""v_and_b32 v{c}, 30, v0
              v_add_u32 v{c}, s{T0}, v{c}
              global_load_ushort v{TMP + 8}, v{c}, s[{pLRE}:{pLRE + 1}]
              global_load_ushort v{TMP + 9}, v{c}, s[{pLIM}:{pLIM + 1}]
              global_load_ushort v{TMP + 10}, v{c}, s[{pLDT}:{pLDT + 1}]
              s_lshl_b32 s{T0}, s{sS}, 3
              s_add_u32 s{T0}, s{T0}, s{sW}
              s_lshl_b32 s{sW1}, s{T0}, 6
              v_lshrrev_b32 v{d}, 5, v0
              v_lshl_add_u32 v{c}, v{d}, 3, s{sW1}""")
        for ps in range(2):
            for j in range(4):
                r = BIAS + 16 * ps + 4 * j
                S(f"global_load_dwordx2 {vr(r + 2, 2)}, v{c}, s[{pB1}:{pB1 + 1}] offset:{ps * 256 + j * 16}")
        S(f"""s_and_b32 s{T1}, s{sW}, 1
              s_lshl1_add_u32 s{T0}, s{sS}, s{T1}
              s_lshl_b32 s{T0}, s{T0}, 6
              v_and_b32 v{e}, 31, v0
              v_lshl_add_u32 v{c}, v{e}, 1, s{T0}
              global_load_ushort v{vDSK}, v{c}, s[{pDSK}:{pDSK + 1}]""")
        for r in range(4):
            if r < 3:
                S(f"""s_lshr_b32 s{T2}, s{sW}, 1
                      s_add_u32 s{T2}, s{T2}, {2 * r}
                      s_add_u32 s{T0}, s{T2}, s{sS}
                      s_add_u32 s{T0}, s{T0}, 1
                      s_cmp_ge_u32 s{T0}, 7
                      s_cselect_b32 s{sOFF}, 7, 0
                      s_sub_u32 s{T0}, s{T0}, s{sOFF}""")
            else:
                S(f"s_mov_b32 s{T0}, s{sS}\ns_mov_b32 s{T2}, 0")
            dst = sE + r if r < 3 else sEOWN
            S(f"""s_lshl1_add_u32 s{T0}, s{T0}, s{T1}
                  s_mul_i32 s{sOFF}, s{sM}, 14
                  s_add_u32 s{sOFF}, s{sOFF}, s{T0}
                  s_lshl3_add_u32 s{dst}, s{sOFF}, s{T2}
                  s_mul_i32 s{sOFF}, s{sS}, {256 * 896}
                  s_lshl_b32 s{T2}, s{T0}, 6
                  s_add_u32 s{sW2 + r}, s{sOFF}, s{T2}
                  s_mul_i32 s{T0}, s{T0}, {32 * 896}
                  s_lshl_b32 s{T2}, s{sS}, 7
                  s_add_u32 s{sC + r}, s{T0}, s{T2}""")
        S(f"""s_lshr_b32 s{T2}, s{sW}, 1
              s_mul_i32 s{T0}, s{T2}, {2 * 64 * 896}
              s_add_u32 s{sW2 + 3}, s{sW2 + 3}, s{T0}""")
        S(f"""v_cmp_eq_u32 vcc, 0, v0
              v_bfrev_b32 v{c}, 1
              s_sub_u32 s{T0}, 31, s{sM}
              s_lshl_b32 s{T0}, s{T0}, 7
              v_cndmask_b32 v{vZ0}, v{c}, v0, vcc
              v_lshl_add_u32 v{vES}, v{e}, 2, s{T0}
              v_mov_b32 v{c}, -1
              v_mov_b32 v{vDBG}, 0""")
        self.clears = [S(f"buffer_store_dword v{c}, v{vES}, {srd(EE)}, 0 offen sc1")]
        for r in range(3):
            S(f"s_lshl4_add_u32 s{T0}, s{sE + r}, {WS_FL}")
            self.clears.append(S(f"buffer_store_dword v{vDBG}, v{vZ0}, {srd(WS)}, s{T0} offen sc1"))
        for n in range(4):
            for i in self.dma(n):
                S.add(i)
        S(f"""v_lshl_add_u32 v{vEL}, v{d}, 11, v{vES}
              v_add_u32 v{vEL}, 128, v{vEL}
              s_mov_b32 s{sLO}, 0x00003f80
              s_mov_b32 s{sHI}, 0x3f800000
              s_mov_b32 s{sL2E}, {f2u(LOG2E)}
              s_mov_b32 s{sHM}, 0
              s_mov_b32 s{sHM + 1}, -1""")
        S(f"""s_mul_i32 s{T0}, s{T1}, {XN_TILE}
              s_lshl_b32 s{sOFF}, s{T2}, 6
              s_add_u32 s{T0}, s{T0}, s{sOFF}
              v_mul_u32_u24 v{vXW}, {XN_CH}, v{b}
              v_add_u32 v{vXW}, s{T0}, v{vXW}
              v_lshl_add_u32 v{vXW}, v{d}, 7, v{vXW}
              v_and_b32 v{c}, 3, v{a}
              v_lshl_add_u32 v{vXW}, v{c}, 4, v{vXW}
              s_lshl_b32 s{T0}, s{sW}, 6
              v_lshl_add_u32 v245, v{a}, 2, s{T0}
              v_mul_u32_u24 v{vXR}, {XN_CH}, v{d}
              v_lshl_add_u32 v{vXR}, v{e}, 4, v{vXR}""")
        S(f"""v_bfe_u32 v{a}, v0, 1, 4
              v_and_b32 v{b}, 1, v0
              v_bfe_u32 v{c}, v0, 2, 2
              v_lshl_or_b32 v{c}, v{b}, 2, v{c}
              v_xor_b32 v{c}, v{c}, v{d}
              v_lshl_add_u32 v{vRB}, v{c}, 4, s{sRING}
              v_lshl_add_u32 v{vRB}, v{a}, 7, v{vRB}
              v_lshl_add_u32 v{vRB}, v{b}, 11, v{vRB}
              v_xor_b32 v{vRB + 1}, 32, v{vRB}
              v_xor_b32 v{vRB + 2}, 64, v{vRB}
              v_xor_b32 v{vRB + 3}, 0x60, v{vRB}""")

    def late_setup(self):
        a, b, c, d, e = 232 + 8, 241, 242, 243, 244
        o = L(f"""v_lshrrev_b32 v{d}, 5, v0
              v_and_b32 v{e}, 31, v0
              v_and_b32 v{b}, 3, v0
              v_bfe_u32 v{a}, v0, 2, 2
              v_bfe_u32 v{c}, v0, 4, 1
              v_lshl_add_u32 v{vRW2}, v{b}, 3, s{sRING}
              v_lshl_add_u32 v{vRW2}, v{a}, 6, v{vRW2}
              v_lshl_add_u32 v{vRW2}, v{c}, 5, v{vRW2}
              v_lshl_add_u32 v{vRW1}, v{d}, 9, v{vRW2}
              v_lshl_add_u32 v{vRW2}, v{d}, 8, v{vRW2}""")
        o += L(f"""s_lshr_b32 s{T2}, s{sW}, 1
              s_lshl_b32 s{T0}, s{T2}, 10
              v_lshl_or_b32 v{c}, v{c}, 2, v{b}
              v_lshrrev_b32 v{b}, 1, v{a}
              v_xor_b32 v{c}, v{c}, v{b}
              v_lshl_add_u32 v{vSR}, v{c}, 3, s{T0}
              v_lshl_add_u32 v{vSR}, v{a}, 6, v{vSR}
              v_lshl_add_u32 v{vSR}, v{d}, 9, v{vSR}""")
        for k in range(1, 8):
            t, ri, rd = k >> 2, (k >> 1) & 1, k & 1
            o += L(f"v_xor_b32 v{vSR + k}, {t * 1024 + ri * 32 + rd * 16}, v{vSR}")
        o += L(f"""v_lshl_add_u32 v{vHR}, v0, 4, s{T0}
              v_xor_b32 v{vHR + 1}, 0x400, v{vHR}
              s_lshl_b32 s{T0}, s{T2}, 11
              v_lshl_add_u32 v{vPT}, v0, 4, s{T0}
              v_xor_b32 v{vPT + 1}, 0x800, v{vPT}
              s_lshl_b32 s{T0}, s{sW}, 12
              v_lshl_add_u32 v{vHW}, v0, 4, s{T0}""")
        o += L(f"""s_lshl_b32 s{T0}, s{sW}, 11
              s_add_u32 s{T0}, s{T0}, 32768
              v_and_b32 v{b}, 1, v0
              v_lshl_or_b32 v{c}, v{b}, 2, v{a}
              v_xor_b32 v{c}, v{c}, v{d}
              v_lshl_add_u32 v{vSW}, v{c}, 3, s{T0}
              v_lshl_add_u32 v{vSW}, v{b}, 13, v{vSW}
              v_bfe_u32 v{c}, v0, 1, 4
              v_lshl_add_u32 v{vSW}, v{c}, 6, v{vSW}
              v_xor_b32 v{vSW + 1}, 16, v{vSW}
              v_xor_b32 v{vSW + 2}, 32, v{vSW}
              v_xor_b32 v{vSW + 3}, 48, v{vSW}""")
        o += L(f"""v_bfe_u32 v{c}, v0, 1, 3
              v_xor_b32 v{c}, v{c}, v{d}
              v_lshl_add_u32 v{vRC}, v{c}, 4, s{sRING}
              v_lshl_add_u32 v{vRC}, v{e}, 7, v{vRC}
              v_xor_b32 v{vRC + 1}, 32, v{vRC}
              v_xor_b32 v{vRC + 2}, 64, v{vRC}
              v_xor_b32 v{vRC + 3}, 0x60, v{vRC}""")
        return o

    def wdma_setup(self):
        a, b = 246, 247
        o = L(f"""v_lshrrev_b32 v{a}, 2, v0
              v_and_b32 v{b}, 3, v0
              v_lshlrev_b32 v{b}, 4, v{b}
              v_mul_u32_u24 v{vDW2}, 896, v{a}
              v_lshl_add_u32 v{vDW1}, v{vDW2}, 2, v{b}
              v_add_u32 v{vDW2}, v{vDW2}, v{b}""")
        for j in range(1, 4):
            o += L(f"v_add_u32 v{vDW1 + j}, {j * (16 * 3584 - 1024)}, v{vDW1}\n"
                   f"v_add_u32 v{vDW2 + j}, {j * (16 * 896 - 1024)}, v{vDW2}")
        return o

    def layernorm(self):
        S = self.S
        o = []
        ones = T0
        S(f"s_mov_b32 s{ones}, 0x3f803f80")
        self.ln_writes = []
        D = RSS
        for g in range(2):
            xr = FA + 28 * g
            s0, mean, mb, sq = 224, 228, 229, 230
            for k in range(28):
                c = f"v{s0 + k % 4}" if k >= 4 else "0"
                o += L(f"v_dot2_f32_bf16 v{s0 + k % 4}, v{xr + k}, s{ones}, {c}")
            o += L(f"""v_add_f32 v{s0}, v{s0}, v{s0 + 1}
                       v_add_f32 v{s0 + 2}, v{s0 + 2}, v{s0 + 3}
                       v_add_f32 v{s0}, v{s0}, v{s0 + 2}""")
            o += self.allred8(s0)
            o += L(f"v_mul_f32 v{mean}, {f2u(-1.0 / 448)}, v{s0}") + self.rb(mb, mean)
            for i in range(7):
                dd = D + 8 * (i % 2)
                for k in range(4):
                    o += L(f"v_dot2_f32_bf16 v{dd + 2 * k}, v{xr + 4 * i + k}, s{sLO}, v{mb}\n"
                           f"v_dot2_f32_bf16 v{dd + 2 * k + 1}, v{xr + 4 * i + k}, s{sHI}, v{mb}")
                for k in range(4):
                    p = vr(dd + 2 * k, 2)
                    acc = vr(sq + 2 * (k % 2), 2)
                    o += L(f"v_cvt_pk_bf16_f32 v{xr + 4 * i + k}, v{dd + 2 * k}, v{dd + 2 * k + 1}")
                    if i == 0 and k < 2:
                        o += L(f"v_pk_mul_f32 {acc}, {p}, {p}")
                    else:
                        o += L(f"v_pk_fma_f32 {acc}, {p}, {p}, {acc}")
                w = L(f"ds_write_b128 v{vXW}, {vr(xr + 4 * i, 4)} offset:{i * 8 * XN_CH + g * 256}")
                self.ln_writes += w
                o += w
            o += L(f"""v_pk_add_f32 {vr(sq, 2)}, {vr(sq, 2)}, {vr(sq + 2, 2)}
                       v_sub_f32 v{mean}, v{mean}, v{mb}
                       v_add_f32 v{sq}, v{sq}, v{sq + 1}
                       v_mul_f32 v{mean}, v{mean}, v{mean}""")
            o += self.allred8(sq)
            o += L(f"v_mov_b32 v{sq + 1}, {f2u(1.0 / 448)}\nv_fma_f32 v{sq}, v{sq}, v{sq + 1}, -v{mean}")
            o += self.rb(sq, sq) + L(f"v_add_f32 v{sq}, {f2u(1e-5)}, v{sq}") + self.rb(sq, sq)
            o += L(f"v_sqrt_f32 v{sq}, v{sq}") + self.rb(sq, sq) + L(f"v_rcp_f32 v{sq}, v{sq}")
            w = L(f"ds_write_b32 v245, v{mb} offset:{MEAN + g * 32}\nds_write_b32 v245, v{sq} offset:{RS + g * 32}")
            self.ln_writes += w
            o += w
        dm = [self.dma(n) for n in range(4, self.lead)]
        step = (len(o) - 40) // len(dm)
        for k, i in enumerate(o):
            S.add(i)
            if k >= 30 and (k - 30) % step == 0 and dm:
                for x in dm.pop(0):
                    S.add(x)
        assert not dm

    def ssm_params(self):
        lre, lim, ldt, t, u, sg = TMP + 8, TMP + 9, TMP + 10, TMP + 11, TMP + 6, TMP + 7
        o = L(f"""v_lshlrev_b32 v{ldt}, 16, v{ldt}
              v_lshlrev_b32 v{lre}, 16, v{lre}
              v_mul_f32 v{ldt}, s{sL2E}, v{ldt}
              v_lshlrev_b32 v{lim}, 16, v{lim}
              v_exp_f32 v{ldt}, v{ldt}
              v_lshlrev_b32 v{sg}, 31, v0""")
        o += self.rb(ldt, ldt)
        o += L(f"""v_mul_f32 v{t}, v{ldt}, v{lre}
              v_mul_f32 v{u}, v{ldt}, v{lim}
              v_mul_f32 v{t}, s{sL2E}, v{t}
              v_mul_f32 v{u}, 0.15915494, v{u}
              v_exp_f32 v{t}, v{t}
              v_rndne_f32 v{ldt}, v{u}
              v_sub_f32 v{u}, v{u}, v{ldt}
              v_mul_f32 v{ldt}, v{lre}, v{lre}
              v_cos_f32 v{AR}, v{u}
              v_fmac_f32 v{ldt}, v{lim}, v{lim}
              v_sin_f32 v{AX}, v{u}
              v_rcp_f32 v{ldt}, v{ldt}
              v_mul_f32 v{AR}, v{AR}, v{t}
              v_mul_f32 v{AX}, v{AX}, v{t}
              v_mul_f32 v{ldt}, {f2u(2 * LOG2E)}, v{ldt}
              v_subrev_f32 v{t}, 1.0, v{AR}
              v_mul_f32 v{GO}, v{AX}, v{lim}
              v_mul_f32 v{GX}, v{t}, v{lim}
              v_fmac_f32 v{GO}, v{t}, v{lre}
              v_fma_f32 v{GX}, -v{AX}, v{lre}, v{GX}
              v_mul_f32 v{GO}, v{GO}, v{ldt}
              v_mul_f32 v{GX}, v{GX}, v{ldt}
              v_xor_b32 v{AX}, v{sg}, v{AX}
              v_xor_b32 v{GO}, v{sg}, v{GO}""")
        cr, cx = AR, AX
        tmp = [(lre, lim), (t, u)]
        dest = {4: (P16R, P16X), 5: (P32R, P32X), 6: (P64R, P64X), 10: (PKR, PKX)}
        for k in range(1, 11):
            nr, nx = dest.get(k, tmp[k % 2])
            o += L(f"""v_mul_f32 v{nr}, v{cx}, v{cx}
                       v_add_f32 v{nx}, v{cr}, v{cr}
                       v_fma_f32 v{nr}, v{cr}, v{cr}, -v{nr}
                       v_mul_f32 v{nx}, v{nx}, v{cx}""")
            cr, cx = nr, nx
        return o

    def bias_setup(self):
        o = []
        for q in range(8):
            r = BIAS + 4 * q
            o += L(f"""v_lshlrev_b32 v{r}, 16, v{r + 2}
                       v_and_b32 v{r + 1}, 0xffff0000, v{r + 2}
                       v_lshlrev_b32 v{r + 2}, 16, v{r + 3}
                       v_and_b32 v{r + 3}, 0xffff0000, v{r + 3}""")
            o += [Ins(f"v_mul_f32 v{r + k}, s{sL2E}, v{r + k}") for k in range(4)]
        return o

    def stats_reads(self):
        a, b = 245, 246
        o = L(f"""v_lshrrev_b32 v{a}, 5, v0
              v_bfe_u32 v{b}, v0, 2, 1
              v_lshlrev_b32 v{a}, 7, v{a}
              v_lshlrev_b32 v{b}, 7, v{b}""")
        o += [Ins(f"ds_read_b128 {vr(RSS + 4 * k, 4)}, v{a} offset:{RS + 16 * k}") for k in range(8)]
        o += L(f"""v_bfe_u32 v{a}, v0, 3, 2
              v_lshl_add_u32 v{b}, v{a}, 4, v{b}
              v_and_b32 v{a}, 3, v0
              v_lshl_add_u32 v{b}, v{a}, 2, v{b}
              ds_read_b32 v{vRSF}, v{b} offset:{RS}
              ds_read_b32 v{vRSF + 1}, v{b} offset:{RS + 64}""")
        return o

    def scan1(self):
        o = L(f"v_mul_f32 v{vRSF}, s{sL2E}, v{vRSF}\nv_mul_f32 v{vRSF + 1}, s{sL2E}, v{vRSF + 1}")

        def gam(t, k):
            u, tt = SA + 16 * t + k, TMP + (2 * k + t) % 4
            return L(f"""v_mul_f32_dpp v{tt}, v{u}, v{GX} {DPPX}
                         v_fmac_f32 v{tt}, v{GO}, v{u}
                         v_mul_f32 v{u}, v{tt}, v{RSS + 16 * t + k}""")

        o += gam(0, 0) + gam(1, 0) + gam(0, 1) + gam(1, 1)
        e = [SA, SA + 16]
        for k in range(1, 16):
            n = [TMP + 4 + 2 * (k % 2), TMP + 5 + 2 * (k % 2)]
            if k == 15:
                n = [vE0, vEH]
            o += [Ins(f"v_fma_f32 v{n[t]}, v{AR}, v{e[t]}, v{SA + 16 * t + k}") for t in range(2)]
            if k < 15:
                o += gam(0, k + 1)
            o += [Ins(f"v_fmac_f32_dpp v{n[t]}, v{e[t]}, v{AX} {DPPX}") for t in range(2)]
            if k < 15:
                o += gam(1, k + 1)
            e = n
        hi = TMP
        o += self.cmul_acc(vEH, vE0, P16R, P16X)
        o += L(f"v_mov_b32 v{hi}, v{vEH}\nv_permlane32_swap_b32 v{vEH}, v{hi}")
        o += self.cmul_acc(hi, vEH, P32R, P32X)
        o += L(f"v_min_u32 v{hi}, -2, v{hi}\nbuffer_store_dword v{hi}, v{vES}, {srd(EE)}, 0 offen sc1")
        return o

    def mish(self, acc, ps, groups, pk):
        o = []
        for t, u in groups:
            r0, b0 = acc + 16 * t + 8 * u, BIAS + 16 * ps + 8 * u
            for hf in range(2):
                r, b = r0 + 4 * hf, b0 + 4 * hf
                e, a = TMP, TMP + 4
                if pk:
                    rs = vr(vRSF, 2)
                    sel = "op_sel:[0,1,0] op_sel_hi:[1,1,1]" if t else "op_sel_hi:[1,0,1]"
                    o += [Ins(f"v_pk_fma_f32 {vr(r + k, 2)}, {vr(r + k, 2)}, {rs}, {vr(b + k, 2)} {sel}") for k in (0, 2)]
                    o += [Ins(f"v_exp_f32 v{e + k}, v{r + k}") for k in range(4)]
                    o += [Ins(f"v_pk_fma_f32 {vr(a + k, 2)}, {vr(e + k, 2)}, 0.5, 1.0 op_sel_hi:[1,0,0]") for k in (0, 2)]
                    o += [Ins(f"v_pk_fma_f32 {vr(a + k, 2)}, {vr(e + k, 2)}, {vr(a + k, 2)}, 1.0 op_sel_hi:[1,1,0]") for k in (0, 2)]
                    o += [Ins(f"v_rcp_f32 v{a + k}, v{a + k}") for k in range(4)]
                    o += [Ins(f"v_pk_fma_f32 {vr(r + k, 2)}, {vr(r + k, 2)}, {vr(a + k, 2)}, {vr(r + k, 2)} "
                              f"neg_lo:[1,0,0] neg_hi:[1,0,0]") for k in (0, 2)]
                else:
                    o += [Ins(f"v_fma_f32 v{r + k}, v{r + k}, v{vRSF + t}, v{b + k}") for k in range(4)]
                    o += [Ins(f"v_exp_f32 v{e + k}, v{r + k}") for k in range(4)]
                    o += [Ins(f"v_fma_f32 v{a + k}, v{e + k}, 0.5, 1.0") for k in range(4)]
                    o += [Ins(f"v_fma_f32 v{a + k}, v{e + k}, v{a + k}, 1.0") for k in range(4)]
                    o += [Ins(f"v_rcp_f32 v{a + k}, v{a + k}") for k in range(4)]
                    o += [Ins(f"v_fma_f32 v{r + k}, -v{r + k}, v{a + k}, v{r + k}") for k in range(4)]
            o += [Ins(f"v_cvt_pk_bf16_f32 v{r0 + k}, v{r0 + 2 * k}, v{r0 + 2 * k + 1}") for k in range(4)]
            w = Ins(f"ds_write_b128 v{vHW}, {vr(r0, 4)} offset:{ps * 16384 + u * 2048 + t * 1024}")
            self.hid_writes.append(w)
            o.append(w)
        return o

    def spin(self, name, loads, check):
        self.tail.append(f"L_{name}_spin:\ns_cmp_eq_u32 s{sSPIN}, 0\ns_cbranch_scc1 L_{name}_ok\ns_sub_u32 s{sSPIN}, s{sSPIN}, 1\n"
                         + "\n".join(loads) + "\ns_waitcnt vmcnt(0)\n" + "\n".join(check)
                         + f"\ns_nop 1\ns_cbranch_vccnz L_{name}_spin\ns_branch L_{name}_ok")
        return L("\n".join(check)) + L(f"s_cbranch_vccnz L_{name}_spin") + [Ins(f"L_{name}_ok:", raw=True)]

    def e_loads(self):
        return [f"buffer_load_dword v{RSS + k}, v{vEL}, {srd(EE)}, 0 offen offset:{128 * k} sc1" for k in range(16)]

    def scan2(self):
        E = RSS
        mx = TMP + 8
        chk = [f"v_max3_u32 v{mx}, v{E}, v{E + 1}, v{E + 2}"]
        chk += [f"v_max3_u32 v{mx}, v{mx}, v{E + k}, v{E + k + 1}" for k in range(3, 15, 2)]
        chk += [f"v_max_u32 v{mx}, v{mx}, v{E + 15}", f"v_cmp_eq_u32 vcc, -1, v{mx}"]
        o = self.spin("carry", self.e_loads(), chk)
        for k in range(14, -1, -1):
            o += self.cmul_acc(E + k, E + k + 1, P64R, P64X)
        c, hi = E, E + 1
        o += L(f"v_mov_b32 v{hi}, v{c}\nv_permlane32_swap_b32 v{c}, v{hi}")
        o += self.cmul_acc(c, hi, PKR, PKX)
        o += self.cmul_acc(vEH, c, P32R, P32X)
        o += L(f"v_cndmask_b32 v{c}, v{c}, v{vEH}, s[{sHM}:{sHM + 1}]")
        o += self.cmul_acc(vE0, c, P16R, P16X)
        prev = [c, vE0]
        for k in range(16):
            for t in range(2):
                o += self.cmul_acc(SA + 16 * t + k, prev[t], AR, AX)
                prev[t] = SA + 16 * t + k
            if k % 4 == 0 and k:
                o += self.hs_write(k // 4 - 1)
        o += self.hs_write(3)
        return o

    def hs_write(self, j):
        o = []
        for t in range(2):
            u, d = SA + 16 * t + 4 * j, RSS + 16 + 4 * (j % 2) + 2 * t
            o += L(f"v_cvt_pk_bf16_f32 v{d}, v{u}, v{u + 1}\nv_cvt_pk_bf16_f32 v{d + 1}, v{u + 2}, v{u + 3}")
            w = Ins(f"ds_write_b64 v{vSW + j}, {vr(d, 2)} offset:{t * 1024}")
            self.hid_writes.append(w)
            o.append(w)
        return o

    def publish(self, r):
        acc = (FA, FB, SA)[r]
        o = L(f"s_lshl_b32 s{T0}, s{sE + r}, 12\ns_add_u32 s{T0}, s{T0}, {WS_PT}")
        st = []
        for t in range(2):
            for hf in range(2):
                r0 = acc + 16 * t + 8 * hf
                o += [Ins(f"v_cvt_pk_bf16_f32 v{r0 + k}, v{r0 + 2 * k}, v{r0 + 2 * k + 1}") for k in range(4)]
                s = Ins(f"buffer_store_dwordx4 {vr(r0, 4)}, v{vPT + t}, {srd(WS)}, s{T0} offen offset:{hf * 1024} sc1")
                st.append(s)
                o.append(s)
        flag = L(f"s_lshl4_add_u32 s{T1}, s{sE + r}, {WS_FL}")
        flag += L(f"buffer_store_dword v{vDBG}, v{vZ0}, {srd(WS)}, s{T1} offen sc1", after=st)
        return o, flag

    def base_loads(self):
        a, b = TMP + 8, TMP + 9
        o = L(f"""s_lshr_b32 s{T2}, s{sW}, 1
              s_lshl_b32 s{sROW}, s{sM}, 6
              s_lshl4_add_u32 s{sROW}, s{T2}, s{sROW}
              s_mul_i32 s{sROW}, s{sROW}, 896
              s_and_b32 s{T1}, s{sW}, 1
              s_lshl1_add_u32 s{T1}, s{sS}, s{T1}
              s_lshl_b32 s{T1}, s{T1}, 6
              s_add_u32 s{sROW}, s{sROW}, s{T1}
              v_lshrrev_b32 v{a}, 5, v0
              v_and_b32 v{b}, 31, v0
              v_mul_u32_u24 v{vXO}, {32 * 896}, v{a}
              v_lshl_add_u32 v{vXO}, v{b}, 1, v{vXO}
              s_lshl_b32 s{T2}, s{T2}, 6
              v_lshl_add_u32 v{a}, v{a}, 7, s{T2}""")
        for j in range(4):
            o += L(f"s_add_u32 s{T2}, s{sROW}, {j * 4 * 896}")
            o += [Ins(f"buffer_load_ushort v{BIAS + 4 * j + i}, v{vXO}, {srd(X)}, s{T2} offen offset:{i * 896}")
                  for i in range(4)]
        o += [Ins(f"ds_read_b128 {vr(BIAS + 16 + 4 * k, 4)}, v{a} offset:{MEAN + 16 * k}") for k in range(4)]
        o += [Ins(f"ds_read_b128 {vr(RSS + 4 * k, 4)}, v{a} offset:{RS + 16 * k}") for k in range(4)]
        return o

    def base_math(self):
        o = L(f"v_lshlrev_b32 v{vDSK}, 16, v{vDSK}\nv_lshlrev_b32 v{vXO}, 1, v{vXO}\ns_lshl_b32 s{sROW}, s{sROW}, 1")
        for k in range(16):
            x, mn, rs = BIAS + k, BIAS + 16 + k, RSS + k
            o += L(f"""v_lshlrev_b32 v{x}, 16, v{x}
                       v_mul_f32 v{rs}, v{rs}, v{vDSK}
                       v_add_f32 v{mn}, v{mn}, v{x}
                       v_fmac_f32 v{x}, v{mn}, v{rs}""")
        return o

    def build(self):
        S = self.S
        self.build_slots()
        self.hid_writes = []
        self.prologue()
        self.layernorm()
        S("s_barrier", after=self.ln_writes + self.clears)
        self.stamp()
        S(f"""s_mov_b32 s{sSPIN}, 200000
              s_lshl_b32 s{T0}, 1, s{sM}
              s_lshl_b32 s{T1}, s{sS}, 2
              s_cmp_eq_u32 s{sW}, 0
              s_cselect_b32 s{T1}, s{T1}, 0x1000
              v_mov_b32 v{TMP}, s{T0}
              v_add_u32 v{TMP + 1}, s{T1}, v{vZ0}""")
        for p in range(2):
            for i in self.aread(p) + self.wread(p):
                S.add(i)
        S(f"buffer_atomic_or v{TMP}, v{TMP + 1}, {srd(DBG)}, 0 offen sc1")
        f1 = self.wdma_setup() + self.late_setup() + self.ssm_params() + self.bias_setup() + self.stats_reads()
        self.run_pairs(0, 28, f1, self.fill[0], skip=0)
        for i in f1:
            S.add(i)
        self.stamp()
        f2 = self.scan1()
        self.run_pairs(28, 56, f2, self.fill[1], extra={40: L("s_barrier")})
        for i in f2:
            S.add(i)
        dbg_ld = f"buffer_load_dword v{vDBG}, v{TMP + 9}, {srd(DBG)}, 0 offen sc1"
        S(f"v_min_u32 v{TMP + 9}, 6, v0\nv_lshlrev_b32 v{TMP + 9}, 2, v{TMP + 9}")
        f3 = self.mish(FA, 0, [(0, 0), (1, 0), (0, 1), (1, 1)], pk=False)
        extra = {60: L(dbg_ld), 78: self.spin("clr", [dbg_ld], [f"v_cmp_ne_u32 vcc, -1, v{vDBG}"]),
                 64: L(f"s_cmp_lt_u32 s{sW}, 2\ns_cselect_b32 s{BRE}, s{CRE}, s{CIM}\n"
                       f"s_cselect_b32 s{BRE + 1}, s{CRE + 1}, s{CIM + 1}")}
        el = self.e_loads()
        for k in range(4):
            extra[80 + k] = L("\n".join(el[4 * k:4 * k + 4]))
        self.run_pairs(56, 84, f3, self.fill[2], extra=extra, last_read=83)
        self.stamp()
        for i in f3 + self.mish(FB, 1, [(0, 0), (1, 0), (0, 1), (1, 1)], pk=True) + self.scan2():
            S.add(i)
        S("s_barrier", after=self.hid_writes)
        self.stamp()
        for p in (84, 85):
            for i in self.aread(p) + self.wread(p):
                S.add(i)
        f = self.base_loads()
        self.run_pairs(84, 108, f, 2)
        assert not f
        pub0, flag0 = self.publish(0)
        f = pub0 + self.base_math()
        self.run_pairs(108, 132, f, self.fill[3], extra={131: flag0})
        assert not f
        pub1, flag1 = self.publish(1)
        own = [d for _, d in self.slots[156:168]]
        self.run_pairs(132, 156, pub1, self.fill[3], extra={155: flag1}, last_read=155)
        assert not pub1
        self.stamp()
        S(f"""s_lshr_b32 s{T2}, s{sW}, 1
              s_mul_i32 s{T2}, s{T2}, {2 * RING_SZ}
              s_sub_u32 s{T2}, {12 * 1024}, s{T2}""")
        for r in [vRW2] + [vRC + k for k in range(4)]:
            S(f"v_add_u32 v{r}, s{T2}, v{r}")
        S("s_barrier", after=own)

        def oread(ks):
            b = WF + 4 * (ks % 4)
            if ks < 16:
                off = (ks >> 3) * 2 * RING_SZ + (ks & 7) * 1024
                return L(f"ds_read_b64_tr_b16 {vr(b, 2)}, v{vRW2} offset:{off}\n"
                         f"ds_read_b64_tr_b16 {vr(b + 2, 2)}, v{vRW2} offset:{off + 512}")
            off = ((ks - 16) >> 2) * 2 * RING_SZ + 8192
            return L(f"ds_read_b128 {vr(b, 4)}, v{vRC + ks % 4} offset:{off}")

        for ks in range(3):
            for i in oread(ks):
                S.add(i)
        pub2, flag2 = self.publish(2)
        for i in pub2:
            S.add(i)
        S(f"""s_lshl4_add_u32 s{T2}, s{sEOWN}, {WS_FL}
              v_lshlrev_b32 v{TMP + 1}, 4, v0
              v_and_b32 v{TMP}, 0x30, v{TMP + 1}
              v_and_b32 v{TMP + 1}, 0x10, v{TMP + 1}""")
        for ks in range(24):
            S(f"{MF} {vr(FA, 16)}, {ar_(ks * 8, 4)}, {vr(WF + 4 * (ks % 4), 4)}, {vr(FA, 16) if ks else 0}")
            if ks + 3 < 24:
                for i in oread(ks + 3):
                    S.add(i)
        for i in flag2:
            S.add(i)
        self.stamp()
        PL = FA + 16
        S(f"s_lshl_b32 s{T0}, s{sEOWN}, 12\ns_add_u32 s{T0}, s{T0}, {WS_PT}")

        def gather(name, off, voff, ds):
            ld = f"buffer_load_dword v{TMP + 2}, v{voff}, {srd(WS)}, s{T2} offen offset:{off} sc1"
            S(ld)
            for i in self.spin(name, [ld], [f"v_cmp_ne_u32 vcc, -1, v{TMP + 2}"]):
                S.add(i)
            for d in ds:
                S(f"s_add_u32 s{T1}, s{T0}, {d * 4096}")
                for hf in range(2):
                    S(f"buffer_load_dwordx4 {vr(PL + 8 * d + 4 * hf, 4)}, v{vPT}, {srd(WS)}, s{T1} offen offset:{hf * 1024} sc1")

        def accum(ds):
            for d in ds:
                for k in range(8):
                    S(f"v_dot2_f32_bf16 v{FA + 2 * k}, v{PL + 8 * d + k}, s{sLO}, v{FA + 2 * k}\n"
                      f"v_dot2_f32_bf16 v{FA + 2 * k + 1}, v{PL + 8 * d + k}, s{sHI}, v{FA + 2 * k + 1}")

        gather("pa", 0, TMP, range(4))
        gather("pb", 64, TMP + 1, range(4, 6))
        accum(range(6))
        S(f"s_mov_b32 s{T0}, {f2u(LN2)}")
        for k in range(16):
            S(f"v_fmac_f32 v{BIAS + k}, s{T0}, v{FA + k}")
        for k in range(16):
            if k % 2 == 0:
                S(f"s_add_u32 s{T1}, s{sROW}, {k * 1792}")
            S(f"buffer_store_dword v{BIAS + k}, v{vXO}, {srd(OUT)}, s{T1} offen offset:{(k % 2) * 1792} {self.opt.get('outflav', '')}")
        if self.stamps:
            S("s_waitcnt vmcnt(0)")
            self.stamp()
            S("s_waitcnt lgkmcnt(0)")
            for k in range(8):
                S(f"v_mov_b32 v{TMP + k}, s{STAMP0 + 2 * k}")
            S(f"""s_lshl2_add_u32 s{T0}, s2, s{sW}
                  s_lshl_b32 s{T0}, s{T0}, 5
                  s_add_u32 s{T0}, s{T0}, {WS_STAMP}
                  buffer_store_dwordx4 {vr(TMP, 4)}, v{vZ0}, {srd(WS)}, s{T0} offen
                  buffer_store_dwordx4 {vr(TMP + 4, 4)}, v{vZ0}, {srd(WS)}, s{T0} offen offset:16""")
        S.raw("L_exit:")
        S("s_endpgm")
        body = "\n".join(("" if i.raw else "    ") + i.text for i in S.resolve())
        return self.wrap(body + "\n" + "\n".join(self.tail))

    def wrap(self, body):
        ref = open(f"cdna_kernels/{NAME}.s.ref").read().split("\n")
        head = [l for l in ref if l.startswith(";") and "@launch" not in l][:19]
        return "\n".join(head) + f"""
; @launch grid=(224,1,1) block=(256,1,1) lds={LDS_BYTES}
.amdgcn_target "amdgcn-amd-amdhsa--gfx950"
.text
.globl {NAME}_kernel
.p2align 8
.type {NAME}_kernel,@function
{NAME}_kernel:
{body}
.section .rodata,"a"
.p2align 6
.amdhsa_kernel {NAME}_kernel
  .amdhsa_next_free_vgpr 480
  .amdhsa_next_free_sgpr 102
  .amdhsa_accum_offset 256
  .amdhsa_group_segment_fixed_size 0
  .amdhsa_kernarg_size 128
  .amdhsa_user_sgpr_count 2
  .amdhsa_user_sgpr_kernarg_segment_ptr 1
  .amdhsa_system_sgpr_workgroup_id_x 1
  .amdhsa_float_denorm_mode_32 3
.end_amdhsa_kernel
"""


if __name__ == "__main__":
    out = sys.argv[1] if len(sys.argv) > 1 else f"cdna_kernels/{NAME}.s"
    kw = eval("dict(" + (sys.argv[2] if len(sys.argv) > 2 else "") + ")")
    open(out, "w").write(Gen(**kw).build())
```

```python
import struct
import sys

from asmfw import Ins, L, Stream, merge

NAME = "parallel_sum__ssm_conv_s5__dense_activation_mish__prompt"
f2u = lambda x: "0x%08x" % struct.unpack("<I", struct.pack("<f", x))[0]
LOG2E, LN2 = 1.4426950408889634, 0.6931471805599453

XN_TILE, XN_CH = 56 * 528, 528
MEAN, RS = 59136, 59392
RING, RING_SZ = 60416, 24576
LDS_BYTES = RING + 4 * RING_SZ
WS_FL, WS_PT, WS_STAMP, WS_SIZE = 0x20000, 0x100000, 0x40000, 0x1000000

sW, sM, sS, sRING, sOFF, sLO, sHI, sL2E, sBOFF, sW1 = 3, 4, 5, 6, 7, 8, 9, 10, 11, 12
T0, T1, T2 = 13, 14, 15
X, BRE, BIM, CRE, CIM, W1, W2, OUT, WS, EE, DBG = 16, 20, 24, 28, 32, 36, 40, 44, 48, 52, 56
pLRE, pLIM, pLDT, pDSK, pB1 = 60, 62, 64, 66, 68
sW2, sEOWN, sSPIN, sE, sROW, sC, sHM = 70, 74, 75, 76, 79, 80, 84
STAMP0 = 86
srd = lambda b: f"s[{b}:{b + 3}]"

vXO, vXW, vXR = 1, 2, 3
vDB, vDW1, vDW2, vDC = 4, 8, 12, 16
vRB, vRW1, vRW2, vRC = 20, 24, 25, 26
vHR, vHW, vSW, vSR = 30, 32, 33, 37
vPT, vZ0, vEL, vES = 45, 47, 48, 49
AR, AX, GO, GX, P16R, P16X, P32R, P32X, P64R, P64X, PKR, PKX = range(50, 62)
vRSF = 62
SA, FA, FB, BIAS, RSS = 64, 96, 128, 160, 192
WF, TMP = 224, 240
vE0, vEH, vDSK, vDBG = 252, 253, 254, 255
vr = lambda b, n: f"v[{b}:{b + n - 1}]"
ar_ = lambda b, n: f"a[{b}:{b + n - 1}]"
DPPX = "quad_perm:[1,0,3,2] row_mask:0xf bank_mask:0xf"
MF = "v_mfma_f32_32x32x16_bf16"


class Gen:
    def __init__(self, stamps=False, lead=20, fill=(6, 7, 9, 4), **kw):
        self.S = Stream()
        self.stamps = stamps
        self.nstamp = 0
        self.lead = lead
        self.fill = fill
        self.tail = []
        self.opt = kw

    def stamp(self):
        if self.stamps:
            r = STAMP0 + 2 * self.nstamp
            self.S(f"{self.stamps} s[{r}:{r + 1}]")
            self.nstamp += 1

    def build_slots(self):
        slots = []

        def group(sr, voff, soff_ins, kinds=None):
            g = len(slots) // 4
            pos = (g % 6) * 4096
            for j in range(4):
                pre = []
                if j == 0:
                    pre += L(f"s_add_u32 m0, s{sRING}, {pos}") + L(soff_ins)
                s_, imm = sr, j * 1024
                if kinds:
                    s_, imm = kinds[j >> 1], (j & 1) * 1024
                    if j == 2:
                        pre += L(f"s_add_u32 m0, s{sRING}, {pos + 2048}")
                d = Ins(f"buffer_load_dwordx4 v{voff + j}, {srd(s_)}, s{sOFF} offen offset:{imm} lds")
                slots.append((pre, d))

        for g in range(7):
            group(None, vDB, f"s_add_u32 s{sOFF}, s{sBOFF}, {g * 128}", kinds=(BRE, BIM))
        for ps in range(2):
            for g in range(7):
                group(W1, vDW1, f"s_add_u32 s{sOFF}, s{sW1}, {ps * 256 + g * 64 * 3584}")
        for r in range(3):
            for g in range(4):
                group(W2, vDW2, f"s_add_u32 s{sOFF}, s{sW2 + r}, {g * 64 * 896}")
            group(CRE, vDC, f"s_mov_b32 s{sOFF}, s{sC + r}")
            group(CIM, vDC, f"s_mov_b32 s{sOFF}, s{sC + r}")
        for g in range(2):
            group(W2, vDW2, f"s_add_u32 s{sOFF}, s{sW2 + 3}, {g * 64 * 896}")
        group(BRE, vDC, f"s_mov_b32 s{sOFF}, s{sC + 3}")
        self.slots = slots
        self.slot_readers = {}

    def dma(self, n):
        if n >= len(self.slots):
            return []
        pre, d = self.slots[n]
        d.after = list(self.slot_readers.get(n - 24, []))
        return pre + [d]

    def wread(self, p):
        b = WF + 4 * (p % 4)
        pos = (p % 24) * 1024
        gpos = pos & ~4095
        g0 = p & ~3
        if p < 28:
            ins, dep = L(f"ds_read_b128 {vr(b, 4)}, v{vRB + p % 4} offset:{gpos}"), range(g0, g0 + 4)
        elif p < 84:
            ins, dep = L(f"ds_read_b64_tr_b16 {vr(b, 2)}, v{vRW1} offset:{pos}\n"
                         f"ds_read_b64_tr_b16 {vr(b + 2, 2)}, v{vRW1} offset:{pos + 256}"), [p]
        elif (p - 84) % 24 < 16:
            ins, dep = L(f"ds_read_b64_tr_b16 {vr(b, 2)}, v{vRW2} offset:{pos}\n"
                         f"ds_read_b64_tr_b16 {vr(b + 2, 2)}, v{vRW2} offset:{pos + 512}"), [p]
        else:
            ins, dep = L(f"ds_read_b128 {vr(b, 4)}, v{vRC + p % 4} offset:{gpos}"), range(g0, g0 + 4)
        deps = [self.slots[n][1] for n in dep]
        for i in ins:
            i.after = deps
        for n in dep:
            self.slot_readers.setdefault(n, []).extend(ins)
        return ins

    def aread(self, p):
        if p < 28:
            return [Ins(f"ds_read_b128 {ar_((p * 2 + t) * 4, 4)}, v{vXR} offset:{t * XN_TILE + p * 2 * XN_CH}")
                    for t in range(2)]
        if 84 <= p < 100:
            ks = p - 84
            return [Ins(f"ds_read_b128 {ar_((ks * 2 + t) * 4, 4)}, v{vHR + t} offset:{ks * 2048}") for t in range(2)]
        if 100 <= p < 108:
            ks = p - 84
            ri = (ks - 16) >> 2
            return [Ins(f"ds_read_b64_tr_b16 {ar_((ks * 2 + t) * 4 + 2 * rd, 2)}, v{vSR + t * 4 + ri * 2 + rd} "
                        f"offset:{ks * 2048 + rd * 256}") for t in range(2) for rd in range(2)]
        return []

    def mfmas(self, p):
        b = vr(WF + 4 * (p % 4), 4)
        out = []
        for t in range(2):
            if p < 84:
                ks, acc = p % 28, (SA, FA, FB)[p // 28] + 16 * t
            else:
                ks, acc = (p - 84) % 24, (FA, FB, SA)[(p - 84) // 24] + 16 * t
            a = ar_((ks * 2 + t) * 4, 4)
            c = vr(acc, 16) if ks else "0"
            x, y = (b, a) if 28 <= p < 84 else (a, b)
            out.append(Ins(f"{MF} {vr(acc, 16)}, {x}, {y}, {c}"))
        return out

    def run_pairs(self, p0, p1, fillers, rate, skip=1, extra=None, last_read=None):
        S = self.S
        cost = lambda i: 2 if i.base in ("v_exp_f32", "v_rcp_f32", "v_sin_f32", "v_cos_f32") else 1
        credit = 0.0
        for p in range(p0, p1):
            m0, m1 = self.mfmas(p)
            nxt = p + 2
            reads = []
            if last_read is None or nxt <= last_read:
                reads = self.aread(nxt) + self.wread(nxt)
                m0.after = [a for r in reads for a in r.after]
            dma = self.dma(p + self.lead)
            take = []
            if p - p0 >= skip:
                credit += rate
                while fillers and credit >= cost(fillers[0]):
                    credit -= cost(fillers[0])
                    take.append(fillers.pop(0))
            ex = extra.get(p, []) if extra else []
            n0 = max(0, (len(take) + len(dma) + len(ex) - len(reads)) // 2)
            for i in [m0] + reads + take[:n0] + [m1] + dma + ex + take[n0:]:
                S.add(i)

    def cmul_acc(self, d, y, pr, px):
        return L(f"v_fmac_f32_dpp v{d}, v{y}, v{px} {DPPX}\nv_fmac_f32 v{d}, v{pr}, v{y}")

    def rb(self, d, s):
        return L(f"v_cvt_pk_bf16_f32 v{d}, v{s}, v{s}\nv_and_b32 v{d}, 0xffff0000, v{d}")

    def allred8(self, r):
        return L(f"v_add_f32_dpp v{r}, v{r}, v{r} quad_perm:[1,0,3,2] row_mask:0xf bank_mask:0xf\n"
                 f"v_add_f32_dpp v{r}, v{r}, v{r} quad_perm:[2,3,0,1] row_mask:0xf bank_mask:0xf\n"
                 f"v_add_f32_dpp v{r}, v{r}, v{r} row_half_mirror row_mask:0xf bank_mask:0xf")

    def prologue(self):
        S = self.S
        S("s_cmp_ge_u32 s2, 224\ns_cbranch_scc1 L_exit")
        self.stamp()
        for b, off in ((X, 0), (BRE, 24), (BIM, 32), (WS, 120), (pB1, 88), (W1, 80), (CRE, 40), (CIM, 48), (W2, 96),
                       (OUT, 104), (DBG, 112)):
            S(f"s_load_dwordx2 s[{b}:{b + 1}], s[0:1], {off}")
        S(f"s_load_dwordx4 s[{pLRE}:{pLRE + 3}], s[0:1], 8\ns_load_dwordx4 s[{pLDT}:{pLDT + 3}], s[0:1], 56")
        S(f"v_lshrrev_b32 v1, 6, v0\nv_and_b32 v0, 63, v0\nv_readfirstlane_b32 s{sW}, v1")
        S(f"""s_and_b32 s{T0}, s2, 1
              s_mul_i32 s{T0}, s{T0}, 28
              s_lshr_b32 s{T1}, s2, 3
              s_add_u32 s{T0}, s{T0}, s{T1}
              s_lshr_b32 s{sS}, s{T0}, 3
              s_and_b32 s{T0}, s{T0}, 7
              s_bfe_u32 s{T1}, s2, 0x20001
              s_lshl3_add_u32 s{sM}, s{T1}, s{T0}""")
        for b, n in ((X, 2048 * 896), (BRE, 448 * 896), (BIM, 448 * 896), (CRE, 448 * 896), (CIM, 448 * 896),
                     (W1, 448 * 3584), (W2, 1792 * 896), (OUT, 2048 * 1792), (WS, WS_SIZE), (EE, 4096), (DBG, 256)):
            S(f"s_mov_b32 s{b + 2}, {n}\ns_mov_b32 s{b + 3}, 0x20000")
        a, b, c, d, e = 240, 241, 242, 243, 244
        S(f"""v_lshrrev_b32 v{a}, 3, v0
              v_and_b32 v{b}, 7, v0
              v_mul_u32_u24 v{vXO}, 896, v{a}
              v_lshl_add_u32 v{vXO}, v{b}, 4, v{vXO}
              s_lshl_b32 s{T0}, s{sM}, 6
              s_lshl4_add_u32 s{T0}, s{sW}, s{T0}
              s_mul_i32 s{sROW}, s{T0}, 896""")
        self.xl = []
        for g in range(2):
            if g:
                S(f"s_add_u32 s{T1}, s{sROW}, {8 * 896}")
            for i in range(7):
                r = FA + 28 * g + 4 * i
                self.xl.append(S(f"buffer_load_dwordx4 {vr(r, 4)}, v{vXO}, {srd(X)}, s{T1 if g else sROW} offen offset:{128 * i}"))
        S(f"""s_mul_i32 s{sRING}, s{sW}, {RING_SZ}
              s_add_u32 s{sRING}, s{sRING}, {RING}
              s_lshl_b32 s{T0}, s{sS}, 2
              s_add_u32 s{T0}, s{T0}, s{sW}
              s_mul_i32 s{sBOFF}, s{T0}, {16 * 896}
              s_lshl_b32 s{T1}, s{T0}, 12
              s_add_u32 s{EE}, s{WS}, s{T1}
              s_addc_u32 s{EE + 1}, s{WS + 1}, 0
              s_lshl_b32 s{T0}, s{T0}, 5""")
        S(f"""v_lshrrev_b32 v{c}, 1, v{a}
              v_xor_b32 v{c}, v{c}, v{b}
              v_mul_u32_u24 v{vDB}, 896, v{a}
              v_lshl_add_u32 v{vDB}, v{c}, 4, v{vDB}
              v_add_u32 v{vDB + 1}, {8 * 896 - 1024}, v{vDB}
              v_xor_b32 v{vDB + 2}, 64, v{vDB}
              v_xor_b32 v{vDB + 3}, 64, v{vDB + 1}""")
        S(f"""v_mov_b32 v{vDC}, v{vDB}
              v_mov_b32 v{vDC + 1}, v{vDB + 3}
              v_add_u32 v{vDC + 2}, {2 * (8 * 896 - 1024)}, v{vDB}
              v_add_u32 v{vDC + 3}, {2 * (8 * 896 - 1024)}, v{vDB + 3}""")
        S(f"""v_and_b32 v{c}, 30, v0
              v_add_u32 v{c}, s{T0}, v{c}
              global_load_ushort v{TMP + 8}, v{c}, s[{pLRE}:{pLRE + 1}]
              global_load_ushort v{TMP + 9}, v{c}, s[{pLIM}:{pLIM + 1}]
              global_load_ushort v{TMP + 10}, v{c}, s[{pLDT}:{pLDT + 1}]
              s_lshl_b32 s{T0}, s{sS}, 3
              s_add_u32 s{T0}, s{T0}, s{sW}
              s_lshl_b32 s{sW1}, s{T0}, 6
              v_lshrrev_b32 v{d}, 5, v0
              v_lshl_add_u32 v{c}, v{d}, 3, s{sW1}""")
        for ps in range(2):
            for j in range(4):
                r = BIAS + 16 * ps + 4 * j
                S(f"global_load_dwordx2 {vr(r + 2, 2)}, v{c}, s[{pB1}:{pB1 + 1}] offset:{ps * 256 + j * 16}")
        S(f"""s_and_b32 s{T1}, s{sW}, 1
              s_lshl1_add_u32 s{T0}, s{sS}, s{T1}
              s_lshl_b32 s{T0}, s{T0}, 6
              v_and_b32 v{e}, 31, v0
              v_lshl_add_u32 v{c}, v{e}, 1, s{T0}
              global_load_ushort v{vDSK}, v{c}, s[{pDSK}:{pDSK + 1}]""")
        for r in range(4):
            if r < 3:
                S(f"""s_lshr_b32 s{T2}, s{sW}, 1
                      s_add_u32 s{T2}, s{T2}, {2 * r}
                      s_add_u32 s{T0}, s{T2}, s{sS}
                      s_add_u32 s{T0}, s{T0}, 1
                      s_cmp_ge_u32 s{T0}, 7
                      s_cselect_b32 s{sOFF}, 7, 0
                      s_sub_u32 s{T0}, s{T0}, s{sOFF}""")
            else:
                S(f"s_mov_b32 s{T0}, s{sS}\ns_mov_b32 s{T2}, 0")
            dst = sE + r if r < 3 else sEOWN
            S(f"""s_lshl1_add_u32 s{T0}, s{T0}, s{T1}
                  s_mul_i32 s{sOFF}, s{sM}, 14
                  s_add_u32 s{sOFF}, s{sOFF}, s{T0}
                  s_lshl3_add_u32 s{dst}, s{sOFF}, s{T2}
                  s_mul_i32 s{sOFF}, s{sS}, {256 * 896}
                  s_lshl_b32 s{T2}, s{T0}, 6
                  s_add_u32 s{sW2 + r}, s{sOFF}, s{T2}
                  s_mul_i32 s{T0}, s{T0}, {32 * 896}
                  s_lshl_b32 s{T2}, s{sS}, 7
                  s_add_u32 s{sC + r}, s{T0}, s{T2}""")
        S(f"""s_lshr_b32 s{T2}, s{sW}, 1
              s_mul_i32 s{T0}, s{T2}, {2 * 64 * 896}
              s_add_u32 s{sW2 + 3}, s{sW2 + 3}, s{T0}""")
        S(f"""v_cmp_eq_u32 vcc, 0, v0
              v_bfrev_b32 v{c}, 1
              s_sub_u32 s{T0}, 31, s{sM}
              s_lshl_b32 s{T0}, s{T0}, 7
              v_cndmask_b32 v{vZ0}, v{c}, v0, vcc
              v_lshl_add_u32 v{vES}, v{e}, 2, s{T0}
              v_mov_b32 v{c}, -1
              v_mov_b32 v{vDBG}, 0""")
        self.clears = [S(f"buffer_store_dword v{c}, v{vES}, {srd(EE)}, 0 offen sc1")]
        for r in range(3):
            S(f"s_lshl4_add_u32 s{T0}, s{sE + r}, {WS_FL}")
            self.clears.append(S(f"buffer_store_dword v{vDBG}, v{vZ0}, {srd(WS)}, s{T0} offen sc1"))
        for n in range(4):
            for i in self.dma(n):
                S.add(i)
        S(f"""v_lshl_add_u32 v{vEL}, v{d}, 11, v{vES}
              v_add_u32 v{vEL}, 128, v{vEL}
              s_mov_b32 s{sLO}, 0x00003f80
              s_mov_b32 s{sHI}, 0x3f800000
              s_mov_b32 s{sL2E}, {f2u(LOG2E)}
              s_mov_b32 s{sHM}, 0
              s_mov_b32 s{sHM + 1}, -1""")
        S(f"""s_mul_i32 s{T0}, s{T1}, {XN_TILE}
              s_lshl_b32 s{sOFF}, s{T2}, 6
              s_add_u32 s{T0}, s{T0}, s{sOFF}
              v_mul_u32_u24 v{vXW}, {XN_CH}, v{b}
              v_add_u32 v{vXW}, s{T0}, v{vXW}
              v_lshl_add_u32 v{vXW}, v{d}, 7, v{vXW}
              v_and_b32 v{c}, 3, v{a}
              v_lshl_add_u32 v{vXW}, v{c}, 4, v{vXW}
              s_lshl_b32 s{T0}, s{sW}, 6
              v_lshl_add_u32 v245, v{a}, 2, s{T0}
              v_mul_u32_u24 v{vXR}, {XN_CH}, v{d}
              v_lshl_add_u32 v{vXR}, v{e}, 4, v{vXR}""")
        S(f"""v_bfe_u32 v{a}, v0, 1, 4
              v_and_b32 v{b}, 1, v0
              v_bfe_u32 v{c}, v0, 2, 2
              v_lshl_or_b32 v{c}, v{b}, 2, v{c}
              v_xor_b32 v{c}, v{c}, v{d}
              v_lshl_add_u32 v{vRB}, v{c}, 4, s{sRING}
              v_lshl_add_u32 v{vRB}, v{a}, 7, v{vRB}
              v_lshl_add_u32 v{vRB}, v{b}, 11, v{vRB}
              v_xor_b32 v{vRB + 1}, 32, v{vRB}
              v_xor_b32 v{vRB + 2}, 64, v{vRB}
              v_xor_b32 v{vRB + 3}, 0x60, v{vRB}""")

    def late_setup(self):
        a, b, c, d, e = 232 + 8, 241, 242, 243, 244
        o = L(f"""v_lshrrev_b32 v{d}, 5, v0
              v_and_b32 v{e}, 31, v0
              v_and_b32 v{b}, 3, v0
              v_bfe_u32 v{a}, v0, 2, 2
              v_bfe_u32 v{c}, v0, 4, 1
              v_lshl_add_u32 v{vRW2}, v{b}, 3, s{sRING}
              v_lshl_add_u32 v{vRW2}, v{a}, 6, v{vRW2}
              v_lshl_add_u32 v{vRW2}, v{c}, 5, v{vRW2}
              v_lshl_add_u32 v{vRW1}, v{d}, 9, v{vRW2}
              v_lshl_add_u32 v{vRW2}, v{d}, 8, v{vRW2}""")
        o += L(f"""s_lshr_b32 s{T2}, s{sW}, 1
              s_lshl_b32 s{T0}, s{T2}, 10
              v_lshl_or_b32 v{c}, v{c}, 2, v{b}
              v_lshrrev_b32 v{b}, 1, v{a}
              v_xor_b32 v{c}, v{c}, v{b}
              v_lshl_add_u32 v{vSR}, v{c}, 3, s{T0}
              v_lshl_add_u32 v{vSR}, v{a}, 6, v{vSR}
              v_lshl_add_u32 v{vSR}, v{d}, 9, v{vSR}""")
        for k in range(1, 8):
            t, ri, rd = k >> 2, (k >> 1) & 1, k & 1
            o += L(f"v_xor_b32 v{vSR + k}, {t * 1024 + ri * 32 + rd * 16}, v{vSR}")
        o += L(f"""v_lshl_add_u32 v{vHR}, v0, 4, s{T0}
              v_xor_b32 v{vHR + 1}, 0x400, v{vHR}
              s_lshl_b32 s{T0}, s{T2}, 11
              v_lshl_add_u32 v{vPT}, v0, 4, s{T0}
              v_xor_b32 v{vPT + 1}, 0x800, v{vPT}
              s_lshl_b32 s{T0}, s{sW}, 12
              v_lshl_add_u32 v{vHW}, v0, 4, s{T0}""")
        o += L(f"""s_lshl_b32 s{T0}, s{sW}, 11
              s_add_u32 s{T0}, s{T0}, 32768
              v_and_b32 v{b}, 1, v0
              v_lshl_or_b32 v{c}, v{b}, 2, v{a}
              v_xor_b32 v{c}, v{c}, v{d}
              v_lshl_add_u32 v{vSW}, v{c}, 3, s{T0}
              v_lshl_add_u32 v{vSW}, v{b}, 13, v{vSW}
              v_bfe_u32 v{c}, v0, 1, 4
              v_lshl_add_u32 v{vSW}, v{c}, 6, v{vSW}
              v_xor_b32 v{vSW + 1}, 16, v{vSW}
              v_xor_b32 v{vSW + 2}, 32, v{vSW}
              v_xor_b32 v{vSW + 3}, 48, v{vSW}""")
        o += L(f"""v_bfe_u32 v{c}, v0, 1, 3
              v_xor_b32 v{c}, v{c}, v{d}
              v_lshl_add_u32 v{vRC}, v{c}, 4, s{sRING}
              v_lshl_add_u32 v{vRC}, v{e}, 7, v{vRC}
              v_xor_b32 v{vRC + 1}, 32, v{vRC}
              v_xor_b32 v{vRC + 2}, 64, v{vRC}
              v_xor_b32 v{vRC + 3}, 0x60, v{vRC}""")
        return o

    def wdma_setup(self):
        a, b = 246, 247
        o = L(f"""v_lshrrev_b32 v{a}, 2, v0
              v_and_b32 v{b}, 3, v0
              v_lshlrev_b32 v{b}, 4, v{b}
              v_mul_u32_u24 v{vDW2}, 896, v{a}
              v_lshl_add_u32 v{vDW1}, v{vDW2}, 2, v{b}
              v_add_u32 v{vDW2}, v{vDW2}, v{b}""")
        for j in range(1, 4):
            o += L(f"v_add_u32 v{vDW1 + j}, {j * (16 * 3584 - 1024)}, v{vDW1}\n"
                   f"v_add_u32 v{vDW2 + j}, {j * (16 * 896 - 1024)}, v{vDW2}")
        return o

    def layernorm(self):
        S = self.S
        o = []
        ones = T0
        S(f"s_mov_b32 s{ones}, 0x3f803f80")
        self.ln_writes = []
        D = RSS
        for g in range(2):
            xr = FA + 28 * g
            s0, mean, mb, sq = 224, 228, 229, 230
            for k in range(28):
                c = f"v{s0 + k % 4}" if k >= 4 else "0"
                o += L(f"v_dot2_f32_bf16 v{s0 + k % 4}, v{xr + k}, s{ones}, {c}")
            o += L(f"""v_add_f32 v{s0}, v{s0}, v{s0 + 1}
                       v_add_f32 v{s0 + 2}, v{s0 + 2}, v{s0 + 3}
                       v_add_f32 v{s0}, v{s0}, v{s0 + 2}""")
            o += self.allred8(s0)
            o += L(f"v_mul_f32 v{mean}, {f2u(-1.0 / 448)}, v{s0}") + self.rb(mb, mean)
            for i in range(7):
                dd = D + 8 * (i % 2)
                for k in range(4):
                    o += L(f"v_dot2_f32_bf16 v{dd + 2 * k}, v{xr + 4 * i + k}, s{sLO}, v{mb}\n"
                           f"v_dot2_f32_bf16 v{dd + 2 * k + 1}, v{xr + 4 * i + k}, s{sHI}, v{mb}")
                for k in range(4):
                    p = vr(dd + 2 * k, 2)
                    acc = vr(sq + 2 * (k % 2), 2)
                    o += L(f"v_cvt_pk_bf16_f32 v{xr + 4 * i + k}, v{dd + 2 * k}, v{dd + 2 * k + 1}")
                    if i == 0 and k < 2:
                        o += L(f"v_pk_mul_f32 {acc}, {p}, {p}")
                    else:
                        o += L(f"v_pk_fma_f32 {acc}, {p}, {p}, {acc}")
                w = L(f"ds_write_b128 v{vXW}, {vr(xr + 4 * i, 4)} offset:{i * 8 * XN_CH + g * 256}")
                self.ln_writes += w
                o += w
            o += L(f"""v_pk_add_f32 {vr(sq, 2)}, {vr(sq, 2)}, {vr(sq + 2, 2)}
                       v_sub_f32 v{mean}, v{mean}, v{mb}
                       v_add_f32 v{sq}, v{sq}, v{sq + 1}
                       v_mul_f32 v{mean}, v{mean}, v{mean}""")
            o += self.allred8(sq)
            o += L(f"v_mov_b32 v{sq + 1}, {f2u(1.0 / 448)}\nv_fma_f32 v{sq}, v{sq}, v{sq + 1}, -v{mean}")
            o += self.rb(sq, sq) + L(f"v_add_f32 v{sq}, {f2u(1e-5)}, v{sq}") + self.rb(sq, sq)
            o += L(f"v_sqrt_f32 v{sq}, v{sq}") + self.rb(sq, sq) + L(f"v_rcp_f32 v{sq}, v{sq}")
            w = L(f"ds_write_b32 v245, v{mb} offset:{MEAN + g * 32}\nds_write_b32 v245, v{sq} offset:{RS + g * 32}")
            self.ln_writes += w
            o += w
        dm = [self.dma(n) for n in range(4, self.lead)]
        step = (len(o) - 40) // len(dm)
        for k, i in enumerate(o):
            S.add(i)
            if k >= 30 and (k - 30) % step == 0 and dm:
                for x in dm.pop(0):
                    S.add(x)
        assert not dm

    def ssm_params(self):
        lre, lim, ldt, t, u, sg = TMP + 8, TMP + 9, TMP + 10, TMP + 11, TMP + 6, TMP + 7
        o = L(f"""v_lshlrev_b32 v{ldt}, 16, v{ldt}
              v_lshlrev_b32 v{lre}, 16, v{lre}
              v_mul_f32 v{ldt}, s{sL2E}, v{ldt}
              v_lshlrev_b32 v{lim}, 16, v{lim}
              v_exp_f32 v{ldt}, v{ldt}
              v_lshlrev_b32 v{sg}, 31, v0""")
        o += self.rb(ldt, ldt)
        o += L(f"""v_mul_f32 v{t}, v{ldt}, v{lre}
              v_mul_f32 v{u}, v{ldt}, v{lim}
              v_mul_f32 v{t}, s{sL2E}, v{t}
              v_mul_f32 v{u}, 0.15915494, v{u}
              v_exp_f32 v{t}, v{t}
              v_rndne_f32 v{ldt}, v{u}
              v_sub_f32 v{u}, v{u}, v{ldt}
              v_mul_f32 v{ldt}, v{lre}, v{lre}
              v_cos_f32 v{AR}, v{u}
              v_fmac_f32 v{ldt}, v{lim}, v{lim}
              v_sin_f32 v{AX}, v{u}
              v_rcp_f32 v{ldt}, v{ldt}
              v_mul_f32 v{AR}, v{AR}, v{t}
              v_mul_f32 v{AX}, v{AX}, v{t}
              v_mul_f32 v{ldt}, {f2u(2 * LOG2E)}, v{ldt}
              v_subrev_f32 v{t}, 1.0, v{AR}
              v_mul_f32 v{GO}, v{AX}, v{lim}
              v_mul_f32 v{GX}, v{t}, v{lim}
              v_fmac_f32 v{GO}, v{t}, v{lre}
              v_fma_f32 v{GX}, -v{AX}, v{lre}, v{GX}
              v_mul_f32 v{GO}, v{GO}, v{ldt}
              v_mul_f32 v{GX}, v{GX}, v{ldt}
              v_xor_b32 v{AX}, v{sg}, v{AX}
              v_xor_b32 v{GO}, v{sg}, v{GO}""")
        cr, cx = AR, AX
        tmp = [(lre, lim), (t, u)]
        dest = {4: (P16R, P16X), 5: (P32R, P32X), 6: (P64R, P64X), 10: (PKR, PKX)}
        for k in range(1, 11):
            nr, nx = dest.get(k, tmp[k % 2])
            o += L(f"""v_mul_f32 v{nr}, v{cx}, v{cx}
                       v_add_f32 v{nx}, v{cr}, v{cr}
                       v_fma_f32 v{nr}, v{cr}, v{cr}, -v{nr}
                       v_mul_f32 v{nx}, v{nx}, v{cx}""")
            cr, cx = nr, nx
        return o

    def bias_setup(self):
        o = []
        for q in range(8):
            r = BIAS + 4 * q
            o += L(f"""v_lshlrev_b32 v{r}, 16, v{r + 2}
                       v_and_b32 v{r + 1}, 0xffff0000, v{r + 2}
                       v_lshlrev_b32 v{r + 2}, 16, v{r + 3}
                       v_and_b32 v{r + 3}, 0xffff0000, v{r + 3}""")
            o += [Ins(f"v_mul_f32 v{r + k}, s{sL2E}, v{r + k}") for k in range(4)]
        return o

    def stats_reads(self):
        a, b = 245, 246
        o = L(f"""v_lshrrev_b32 v{a}, 5, v0
              v_bfe_u32 v{b}, v0, 2, 1
              v_lshlrev_b32 v{a}, 7, v{a}
              v_lshlrev_b32 v{b}, 7, v{b}""")
        o += [Ins(f"ds_read_b128 {vr(RSS + 4 * k, 4)}, v{a} offset:{RS + 16 * k}") for k in range(8)]
        o += L(f"""v_bfe_u32 v{a}, v0, 3, 2
              v_lshl_add_u32 v{b}, v{a}, 4, v{b}
              v_and_b32 v{a}, 3, v0
              v_lshl_add_u32 v{b}, v{a}, 2, v{b}
              ds_read_b32 v{vRSF}, v{b} offset:{RS}
              ds_read_b32 v{vRSF + 1}, v{b} offset:{RS + 64}""")
        return o

    def scan1(self):
        o = L(f"v_mul_f32 v{vRSF}, s{sL2E}, v{vRSF}\nv_mul_f32 v{vRSF + 1}, s{sL2E}, v{vRSF + 1}")

        def gam(t, k):
            u, tt = SA + 16 * t + k, TMP + (2 * k + t) % 4
            return L(f"""v_mul_f32_dpp v{tt}, v{u}, v{GX} {DPPX}
                         v_fmac_f32 v{tt}, v{GO}, v{u}
                         v_mul_f32 v{u}, v{tt}, v{RSS + 16 * t + k}""")

        o += gam(0, 0) + gam(1, 0) + gam(0, 1) + gam(1, 1)
        e = [SA, SA + 16]
        for k in range(1, 16):
            n = [TMP + 4 + 2 * (k % 2), TMP + 5 + 2 * (k % 2)]
            if k == 15:
                n = [vE0, vEH]
            o += [Ins(f"v_fma_f32 v{n[t]}, v{AR}, v{e[t]}, v{SA + 16 * t + k}") for t in range(2)]
            if k < 15:
                o += gam(0, k + 1)
            o += [Ins(f"v_fmac_f32_dpp v{n[t]}, v{e[t]}, v{AX} {DPPX}") for t in range(2)]
            if k < 15:
                o += gam(1, k + 1)
            e = n
        hi = TMP
        o += self.cmul_acc(vEH, vE0, P16R, P16X)
        o += L(f"v_mov_b32 v{hi}, v{vEH}\nv_permlane32_swap_b32 v{vEH}, v{hi}")
        o += self.cmul_acc(hi, vEH, P32R, P32X)
        o += L(f"v_min_u32 v{hi}, -2, v{hi}\nbuffer_store_dword v{hi}, v{vES}, {srd(EE)}, 0 offen sc1")
        return o

    def mish(self, acc, ps, groups, pk):
        o = []
        for t, u in groups:
            r0, b0 = acc + 16 * t + 8 * u, BIAS + 16 * ps + 8 * u
            for hf in range(2):
                r, b = r0 + 4 * hf, b0 + 4 * hf
                e, a = TMP, TMP + 4
                if pk:
                    rs = vr(vRSF, 2)
                    sel = "op_sel:[0,1,0] op_sel_hi:[1,1,1]" if t else "op_sel_hi:[1,0,1]"
                    o += [Ins(f"v_pk_fma_f32 {vr(r + k, 2)}, {vr(r + k, 2)}, {rs}, {vr(b + k, 2)} {sel}") for k in (0, 2)]
                    o += [Ins(f"v_exp_f32 v{e + k}, v{r + k}") for k in range(4)]
                    o += [Ins(f"v_pk_fma_f32 {vr(a + k, 2)}, {vr(e + k, 2)}, 0.5, 1.0 op_sel_hi:[1,0,0]") for k in (0, 2)]
                    o += [Ins(f"v_pk_fma_f32 {vr(a + k, 2)}, {vr(e + k, 2)}, {vr(a + k, 2)}, 1.0 op_sel_hi:[1,1,0]") for k in (0, 2)]
                    o += [Ins(f"v_rcp_f32 v{a + k}, v{a + k}") for k in range(4)]
                    o += [Ins(f"v_pk_fma_f32 {vr(r + k, 2)}, {vr(r + k, 2)}, {vr(a + k, 2)}, {vr(r + k, 2)} "
                              f"neg_lo:[1,0,0] neg_hi:[1,0,0]") for k in (0, 2)]
                else:
                    o += [Ins(f"v_fma_f32 v{r + k}, v{r + k}, v{vRSF + t}, v{b + k}") for k in range(4)]
                    o += [Ins(f"v_exp_f32 v{e + k}, v{r + k}") for k in range(4)]
                    o += [Ins(f"v_fma_f32 v{a + k}, v{e + k}, 0.5, 1.0") for k in range(4)]
                    o += [Ins(f"v_fma_f32 v{a + k}, v{e + k}, v{a + k}, 1.0") for k in range(4)]
                    o += [Ins(f"v_rcp_f32 v{a + k}, v{a + k}") for k in range(4)]
                    o += [Ins(f"v_fma_f32 v{r + k}, -v{r + k}, v{a + k}, v{r + k}") for k in range(4)]
            o += [Ins(f"v_cvt_pk_bf16_f32 v{r0 + k}, v{r0 + 2 * k}, v{r0 + 2 * k + 1}") for k in range(4)]
            w = Ins(f"ds_write_b128 v{vHW}, {vr(r0, 4)} offset:{ps * 16384 + u * 2048 + t * 1024}")
            self.hid_writes.append(w)
            o.append(w)
        return o

    def spin(self, name, loads, check):
        self.tail.append(f"L_{name}_spin:\ns_cmp_eq_u32 s{sSPIN}, 0\ns_cbranch_scc1 L_{name}_ok\ns_sub_u32 s{sSPIN}, s{sSPIN}, 1\n"
                         + "\n".join(loads) + "\ns_waitcnt vmcnt(0)\n" + "\n".join(check)
                         + f"\ns_nop 1\ns_cbranch_vccnz L_{name}_spin\ns_branch L_{name}_ok")
        return L("\n".join(check)) + L(f"s_cbranch_vccnz L_{name}_spin") + [Ins(f"L_{name}_ok:", raw=True)]

    def e_loads(self):
        return [f"buffer_load_dword v{RSS + k}, v{vEL}, {srd(EE)}, 0 offen offset:{128 * k} sc1" for k in range(16)]

    def scan2(self):
        E = RSS
        mx = TMP + 8
        chk = [f"v_max3_u32 v{mx}, v{E}, v{E + 1}, v{E + 2}"]
        chk += [f"v_max3_u32 v{mx}, v{mx}, v{E + k}, v{E + k + 1}" for k in range(3, 15, 2)]
        chk += [f"v_max_u32 v{mx}, v{mx}, v{E + 15}", f"v_cmp_eq_u32 vcc, -1, v{mx}"]
        o = self.spin("carry", self.e_loads(), chk)
        for k in range(14, -1, -1):
            o += self.cmul_acc(E + k, E + k + 1, P64R, P64X)
        c, hi = E, E + 1
        o += L(f"v_mov_b32 v{hi}, v{c}\nv_permlane32_swap_b32 v{c}, v{hi}")
        o += self.cmul_acc(c, hi, PKR, PKX)
        o += self.cmul_acc(vEH, c, P32R, P32X)
        o += L(f"v_cndmask_b32 v{c}, v{c}, v{vEH}, s[{sHM}:{sHM + 1}]")
        o += self.cmul_acc(vE0, c, P16R, P16X)
        prev = [c, vE0]
        for k in range(16):
            for t in range(2):
                o += self.cmul_acc(SA + 16 * t + k, prev[t], AR, AX)
                prev[t] = SA + 16 * t + k
            if k % 4 == 0 and k:
                o += self.hs_write(k // 4 - 1)
        o += self.hs_write(3)
        return o

    def hs_write(self, j):
        o = []
        for t in range(2):
            u, d = SA + 16 * t + 4 * j, RSS + 16 + 4 * (j % 2) + 2 * t
            o += L(f"v_cvt_pk_bf16_f32 v{d}, v{u}, v{u + 1}\nv_cvt_pk_bf16_f32 v{d + 1}, v{u + 2}, v{u + 3}")
            w = Ins(f"ds_write_b64 v{vSW + j}, {vr(d, 2)} offset:{t * 1024}")
            self.hid_writes.append(w)
            o.append(w)
        return o

    def publish(self, r):
        acc = (FA, FB, SA)[r]
        o = L(f"s_lshl_b32 s{T0}, s{sE + r}, 12\ns_add_u32 s{T0}, s{T0}, {WS_PT}")
        st = []
        for t in range(2):
            for hf in range(2):
                r0 = acc + 16 * t + 8 * hf
                o += [Ins(f"v_cvt_pk_bf16_f32 v{r0 + k}, v{r0 + 2 * k}, v{r0 + 2 * k + 1}") for k in range(4)]
                s = Ins(f"buffer_store_dwordx4 {vr(r0, 4)}, v{vPT + t}, {srd(WS)}, s{T0} offen offset:{hf * 1024} sc1")
                st.append(s)
                o.append(s)
        flag = L(f"s_lshl4_add_u32 s{T1}, s{sE + r}, {WS_FL}")
        flag += L(f"buffer_store_dword v{vDBG}, v{vZ0}, {srd(WS)}, s{T1} offen sc1", after=st)
        return o, flag

    def base_loads(self):
        a, b = TMP + 8, TMP + 9
        o = L(f"""s_lshr_b32 s{T2}, s{sW}, 1
              s_lshl_b32 s{sROW}, s{sM}, 6
              s_lshl4_add_u32 s{sROW}, s{T2}, s{sROW}
              s_mul_i32 s{sROW}, s{sROW}, 896
              s_and_b32 s{T1}, s{sW}, 1
              s_lshl1_add_u32 s{T1}, s{sS}, s{T1}
              s_lshl_b32 s{T1}, s{T1}, 6
              s_add_u32 s{sROW}, s{sROW}, s{T1}
              v_lshrrev_b32 v{a}, 5, v0
              v_and_b32 v{b}, 31, v0
              v_mul_u32_u24 v{vXO}, {32 * 896}, v{a}
              v_lshl_add_u32 v{vXO}, v{b}, 1, v{vXO}
              s_lshl_b32 s{T2}, s{T2}, 6
              v_lshl_add_u32 v{a}, v{a}, 7, s{T2}""")
        for j in range(4):
            o += L(f"s_add_u32 s{T2}, s{sROW}, {j * 4 * 896}")
            o += [Ins(f"buffer_load_ushort v{BIAS + 4 * j + i}, v{vXO}, {srd(X)}, s{T2} offen offset:{i * 896}")
                  for i in range(4)]
        o += [Ins(f"ds_read_b128 {vr(BIAS + 16 + 4 * k, 4)}, v{a} offset:{MEAN + 16 * k}") for k in range(4)]
        o += [Ins(f"ds_read_b128 {vr(RSS + 4 * k, 4)}, v{a} offset:{RS + 16 * k}") for k in range(4)]
        return o

    def base_math(self):
        o = L(f"v_lshlrev_b32 v{vDSK}, 16, v{vDSK}\nv_lshlrev_b32 v{vXO}, 1, v{vXO}\ns_lshl_b32 s{sROW}, s{sROW}, 1")
        for k in range(16):
            x, mn, rs = BIAS + k, BIAS + 16 + k, RSS + k
            o += L(f"""v_lshlrev_b32 v{x}, 16, v{x}
                       v_mul_f32 v{rs}, v{rs}, v{vDSK}
                       v_add_f32 v{mn}, v{mn}, v{x}
                       v_fmac_f32 v{x}, v{mn}, v{rs}""")
        return o

    def build(self):
        S = self.S
        self.build_slots()
        self.hid_writes = []
        self.prologue()
        self.layernorm()
        S("s_barrier", after=self.ln_writes + self.clears)
        self.stamp()
        S(f"""s_mov_b32 s{sSPIN}, 200000
              s_lshl_b32 s{T0}, 1, s{sM}
              s_lshl_b32 s{T1}, s{sS}, 2
              s_cmp_eq_u32 s{sW}, 0
              s_cselect_b32 s{T1}, s{T1}, 0x1000
              v_mov_b32 v{TMP}, s{T0}
              v_add_u32 v{TMP + 1}, s{T1}, v{vZ0}""")
        for p in range(2):
            for i in self.aread(p) + self.wread(p):
                S.add(i)
        S(f"buffer_atomic_or v{TMP}, v{TMP + 1}, {srd(DBG)}, 0 offen sc1")
        f1 = self.wdma_setup() + self.late_setup() + self.ssm_params() + self.bias_setup() + self.stats_reads()
        self.run_pairs(0, 28, f1, self.fill[0], skip=0)
        for i in f1:
            S.add(i)
        self.stamp()
        f2 = self.scan1()
        self.run_pairs(28, 56, f2, self.fill[1], extra={40: L("s_barrier")})
        for i in f2:
            S.add(i)
        dbg_ld = f"buffer_load_dword v{vDBG}, v{TMP + 9}, {srd(DBG)}, 0 offen sc1"
        S(f"v_min_u32 v{TMP + 9}, 6, v0\nv_lshlrev_b32 v{TMP + 9}, 2, v{TMP + 9}")
        f3 = self.mish(FA, 0, [(0, 0), (1, 0), (0, 1), (1, 1)], pk=False)
        extra = {60: L(dbg_ld), 78: self.spin("clr", [dbg_ld], [f"v_cmp_ne_u32 vcc, -1, v{vDBG}"]),
                 64: L(f"s_cmp_lt_u32 s{sW}, 2\ns_cselect_b32 s{BRE}, s{CRE}, s{CIM}\n"
                       f"s_cselect_b32 s{BRE + 1}, s{CRE + 1}, s{CIM + 1}")}
        el = self.e_loads()
        for k in range(4):
            extra[80 + k] = L("\n".join(el[4 * k:4 * k + 4]))
        self.run_pairs(56, 84, f3, self.fill[2], extra=extra, last_read=83)
        self.stamp()
        for i in f3 + self.mish(FB, 1, [(0, 0), (1, 0), (0, 1), (1, 1)], pk=True) + self.scan2():
            S.add(i)
        S("s_barrier", after=self.hid_writes)
        self.stamp()
        for p in (84, 85):
            for i in self.aread(p) + self.wread(p):
                S.add(i)
        f = self.base_loads()
        self.run_pairs(84, 108, f, 2)
        assert not f
        pub0, flag0 = self.publish(0)
        f = pub0 + self.base_math()
        self.run_pairs(108, 132, f, self.fill[3], extra={131: flag0})
        assert not f
        pub1, flag1 = self.publish(1)
        own = [d for _, d in self.slots[156:168]]
        self.run_pairs(132, 156, pub1, self.fill[3], extra={155: flag1}, last_read=155)
        assert not pub1
        self.stamp()
        S(f"""s_lshr_b32 s{T2}, s{sW}, 1
              s_mul_i32 s{T2}, s{T2}, {2 * RING_SZ}
              s_sub_u32 s{T2}, {12 * 1024}, s{T2}""")
        for r in [vRW2] + [vRC + k for k in range(4)]:
            S(f"v_add_u32 v{r}, s{T2}, v{r}")
        S("s_barrier", after=own)

        def oread(ks):
            b = WF + 4 * (ks % 4)
            if ks < 16:
                off = (ks >> 3) * 2 * RING_SZ + (ks & 7) * 1024
                return L(f"ds_read_b64_tr_b16 {vr(b, 2)}, v{vRW2} offset:{off}\n"
                         f"ds_read_b64_tr_b16 {vr(b + 2, 2)}, v{vRW2} offset:{off + 512}")
            off = ((ks - 16) >> 2) * 2 * RING_SZ + 8192
            return L(f"ds_read_b128 {vr(b, 4)}, v{vRC + ks % 4} offset:{off}")

        for ks in range(3):
            for i in oread(ks):
                S.add(i)
        pub2, flag2 = self.publish(2)
        for i in pub2:
            S.add(i)
        S(f"""s_lshl4_add_u32 s{T2}, s{sEOWN}, {WS_FL}
              v_lshlrev_b32 v{TMP + 1}, 4, v0
              v_and_b32 v{TMP}, 0x30, v{TMP + 1}
              v_and_b32 v{TMP + 1}, 0x10, v{TMP + 1}""")
        for ks in range(24):
            S(f"{MF} {vr(FA, 16)}, {ar_(ks * 8, 4)}, {vr(WF + 4 * (ks % 4), 4)}, {vr(FA, 16) if ks else 0}")
            if ks + 3 < 24:
                for i in oread(ks + 3):
                    S.add(i)
        for i in flag2:
            S.add(i)
        self.stamp()
        PL = FA + 16
        S(f"s_lshl_b32 s{T0}, s{sEOWN}, 12\ns_add_u32 s{T0}, s{T0}, {WS_PT}")

        def gather(name, off, voff, ds):
            ld = f"buffer_load_dword v{TMP + 2}, v{voff}, {srd(WS)}, s{T2} offen offset:{off} sc1"
            S(ld)
            for i in self.spin(name, [ld], [f"v_cmp_ne_u32 vcc, -1, v{TMP + 2}"]):
                S.add(i)
            for d in ds:
                S(f"s_add_u32 s{T1}, s{T0}, {d * 4096}")
                for hf in range(2):
                    S(f"buffer_load_dwordx4 {vr(PL + 8 * d + 4 * hf, 4)}, v{vPT}, {srd(WS)}, s{T1} offen offset:{hf * 1024} sc1")

        def accum(ds):
            for d in ds:
                for k in range(8):
                    S(f"v_dot2_f32_bf16 v{FA + 2 * k}, v{PL + 8 * d + k}, s{sLO}, v{FA + 2 * k}\n"
                      f"v_dot2_f32_bf16 v{FA + 2 * k + 1}, v{PL + 8 * d + k}, s{sHI}, v{FA + 2 * k + 1}")

        gather("pa", 0, TMP, range(4))
        gather("pb", 64, TMP + 1, range(4, 6))
        accum(range(6))
        S(f"s_mov_b32 s{T0}, {f2u(LN2)}")
        for k in range(16):
            S(f"v_fmac_f32 v{BIAS + k}, s{T0}, v{FA + k}")
        for k in range(16):
            if k % 2 == 0:
                S(f"s_add_u32 s{T1}, s{sROW}, {k * 1792}")
            S(f"buffer_store_dword v{BIAS + k}, v{vXO}, {srd(OUT)}, s{T1} offen offset:{(k % 2) * 1792} {self.opt.get('outflav', '')}")
        if self.stamps:
            S("s_waitcnt vmcnt(0)")
            self.stamp()
            S("s_waitcnt lgkmcnt(0)")
            if "probe" in self.opt:
                S(f"s_add_u32 s{T2}, s{STAMP0 + 2 * self.opt['probe']}, 6000")
                S.raw(f"L_probe:\ns_memrealtime s[60:61]\ns_waitcnt lgkmcnt(0)\ns_sub_u32 s{T1}, s60, s{T2}\n"
                      f"s_cmp_lt_i32 s{T1}, 0\ns_cbranch_scc1 L_probe")
            for k in range(8):
                S(f"v_mov_b32 v{TMP + k}, s{STAMP0 + 2 * k}")
            S(f"""s_lshl2_add_u32 s{T0}, s2, s{sW}
                  s_lshl_b32 s{T0}, s{T0}, 5
                  s_add_u32 s{T0}, s{T0}, {WS_STAMP}
                  buffer_store_dwordx4 {vr(TMP, 4)}, v{vZ0}, {srd(WS)}, s{T0} offen
                  buffer_store_dwordx4 {vr(TMP + 4, 4)}, v{vZ0}, {srd(WS)}, s{T0} offen offset:16""")
        S.raw("L_exit:")
        S("s_endpgm")
        body = "\n".join(("" if i.raw else "    ") + i.text for i in S.resolve())
        return self.wrap(body + "\n" + "\n".join(self.tail))

    def wrap(self, body):
        ref = open(f"cdna_kernels/{NAME}.s.ref").read().split("\n")
        head = [l for l in ref if l.startswith(";") and "@launch" not in l][:19]
        return "\n".join(head) + f"""
; @launch grid=(224,1,1) block=(256,1,1) lds={LDS_BYTES}
.amdgcn_target "amdgcn-amd-amdhsa--gfx950"
.text
.globl {NAME}_kernel
.p2align 8
.type {NAME}_kernel,@function
{NAME}_kernel:
{body}
.section .rodata,"a"
.p2align 6
.amdhsa_kernel {NAME}_kernel
  .amdhsa_next_free_vgpr 480
  .amdhsa_next_free_sgpr 102
  .amdhsa_accum_offset 256
  .amdhsa_group_segment_fixed_size 0
  .amdhsa_kernarg_size 128
  .amdhsa_user_sgpr_count 2
  .amdhsa_user_sgpr_kernarg_segment_ptr 1
  .amdhsa_system_sgpr_workgroup_id_x 1
  .amdhsa_float_denorm_mode_32 3
.end_amdhsa_kernel
"""


if __name__ == "__main__":
    out = sys.argv[1] if len(sys.argv) > 1 else f"cdna_kernels/{NAME}.s"
    kw = eval("dict(" + (sys.argv[2] if len(sys.argv) > 2 else "") + ")")
    open(out, "w").write(Gen(**kw).build())
```
